```python
import torch

def _softmax(x, axis=-1):
    return torch.softmax(x, dim=axis)
def _gelu(x):
    return torch.nn.functional.gelu(x, approximate="tanh")
def _silu(x):
    return torch.nn.functional.silu(x)
def _sigmoid(x):
    return torch.sigmoid(x)
def _layernorm(x, axis=-1, eps=1e-5):
    m = x.mean(dim=axis, keepdim=True)
    v = x.var(dim=axis, keepdim=True, unbiased=False)
    return (x - m) / torch.sqrt(v + eps)
def _scatter_add(tgt, idx, src, axis=0):
    return tgt.clone().index_add_(axis, idx, src)
def _segment_sum(src, seg, n):
    out = torch.zeros((n,) + src.shape[1:], dtype=src.dtype)
    return out.index_add_(0, seg, src)
def _pad(x, pw):
    flat = tuple(v for pair in reversed(pw) for v in pair)
    return torch.nn.functional.pad(x, flat)

kernel_name = 'parallel_sum__compressed_kv_cla__glu_gated_bilinear__prompt'

def setup_inputs():

    _w = (lambda a: (lambda t: t.to(torch.bfloat16) if t.is_floating_point() else t)(torch.as_tensor(a)))
    def _A_setup():
        B, H, Sq, Sk, D, M = 1, 16, 2048, 2048, 256, 448
        Dc = 4 * D
        return {
            "x": _w((lambda *s: torch.randn(*s, dtype=torch.bfloat16) * 0.05)(B, Sq, M)),
            "c_kv": _w((lambda *s: torch.randn(*s, dtype=torch.bfloat16) * 0.2)(B, Sk, Dc)),
            "w_q": _w((lambda *s: torch.randn(*s, dtype=torch.bfloat16) * 6.4)(M, H, D) * (M ** -0.5)),
            "w_uk": _w((lambda *s: torch.randn(*s, dtype=torch.bfloat16) * 6.4)(Dc, H, D) * (Dc ** -0.5)),
            "w_uv": _w((lambda *s: torch.randn(*s, dtype=torch.bfloat16) * 0.2)(Dc, H, D) * (Dc ** -0.5)),
            "w_o": _w((lambda *s: torch.randn(*s, dtype=torch.bfloat16) * 0.2)(H, D, M) * ((H * D) ** -0.5)),
        }
    _A_in = _A_setup()

    def _B_setup():
        B, S, D, F = 1, 2048, 448, 1792
        return {
            "x": _w((lambda *s: torch.randn(*s, dtype=torch.bfloat16) * 0.05)(B, S, D)),
            "w_gate": _w((lambda *s: torch.randn(*s, dtype=torch.bfloat16) * 0.2)(D, F) * (D ** -0.5)),
            "w_up": _w((lambda *s: torch.randn(*s, dtype=torch.bfloat16) * 0.2)(D, F) * (D ** -0.5)),
            "w_down": _w((lambda *s: torch.randn(*s, dtype=torch.bfloat16) * 0.2)(F, D) * (F ** -0.5)),
        }
    _B_in = _B_setup()

    return {
        "A_x": _A_in["x"],
        "A_c_kv": _A_in["c_kv"],
        "A_w_q": _A_in["w_q"],
        "A_w_uk": _A_in["w_uk"],
        "A_w_uv": _A_in["w_uv"],
        "A_w_o": _A_in["w_o"],
        "B_x": _B_in["x"],
        "B_w_gate": _B_in["w_gate"],
        "B_w_up": _B_in["w_up"],
        "B_w_down": _B_in["w_down"],
    }

def reference(A_x, A_c_kv, A_w_q, A_w_uk, A_w_uv, A_w_o, B_x, B_w_gate, B_w_up, B_w_down):
    def _A_ref(x, c_kv, w_q, w_uk, w_uv, w_o):
        B, Sq, M = x.shape[0], x.shape[1], x.shape[2]
        Sk = c_kv.shape[1]
        H, D = w_q.shape[1], w_q.shape[2]
        q = torch.einsum("bqm,mhd->bhqd", x, w_q)
        k = torch.einsum("bkc,chd->bhkd", c_kv, w_uk)
        v = torch.einsum("bkc,chd->bhkd", c_kv, w_uv)
        scores = torch.einsum("bhqd,bhkd->bhqk", q, k) * (D ** -0.5)
        off = Sk - Sq
        qi = torch.arange(Sq)[:, None]
        kj = torch.arange(Sk)[None, :]
        cmask = kj <= (qi + off)
        scores = torch.where(cmask[None, None], scores, -1e9)
        p = _softmax(scores, axis=-1)
        ctx = torch.einsum("bhqk,bhkd->bhqd", p, v)
        return torch.einsum("bhqd,hdm->bqm", ctx, w_o)

    def _B_ref(x, w_gate, w_up, w_down):
        g = torch.einsum("bsd,df->bsf", x, w_gate)
        u = torch.einsum("bsd,df->bsf", x, w_up)
        h = g * u
        return torch.einsum("bsf,fd->bsd", h, w_down)

    x = A_x
    xn = _layernorm(x, axis=-1)
    return x + _A_ref(xn, A_c_kv, A_w_q, A_w_uk, A_w_uv, A_w_o) + _B_ref(xn, B_w_gate, B_w_up, B_w_down)
```

```python
class Asm:
    def __init__(self):
        self.lines = []
        self._lab = 0
    def e(self, s):
        for ln in s.split("\n"):
            self.lines.append(ln)
    def label(self, name):
        self.lines.append(name + ":")
    def newlabel(self, stem):
        self._lab += 1
        return "%s_%d" % (stem, self._lab)
    def text(self):
        return "\n".join(self.lines) + "\n"

def vr(base, n=1):
    return "v%d" % base if n == 1 else "v[%d:%d]" % (base, base + n - 1)
def ar(base, n=1):
    return "a%d" % base if n == 1 else "a[%d:%d]" % (base, base + n - 1)
def sr(base, n=1):
    return "s%d" % base if n == 1 else "s[%d:%d]" % (base, base + n - 1)

def kernel_begin(A, name):
    A.e(".text\n.globl %s\n.p2align 8\n.type %s,@function" % (name, name))
    A.label(name)

def kernel_desc(A, name, vgprs, accum, sgprs=102):
    A.e('.section .rodata,"a"\n.p2align 6\n.amdhsa_kernel %s' % name)
    A.e("  .amdhsa_next_free_vgpr %d\n  .amdhsa_next_free_sgpr %d\n  .amdhsa_accum_offset %d" % (vgprs, sgprs, accum))
    A.e("  .amdhsa_group_segment_fixed_size 0\n  .amdhsa_kernarg_size 104\n  .amdhsa_user_sgpr_count 2")
    A.e("  .amdhsa_user_sgpr_kernarg_segment_ptr 1\n  .amdhsa_system_sgpr_workgroup_id_x 1")
    A.e("  .amdhsa_float_denorm_mode_32 3\n  .amdhsa_float_denorm_mode_16_64 3")
    A.e(".end_amdhsa_kernel")

def srd(A, s, ptr_lo, ptr_hi, nbytes):
    A.e("s_mov_b32 s%d, s%d" % (s, ptr_lo))
    A.e("s_and_b32 s%d, s%d, 0xffff" % (s + 1, ptr_hi))
    A.e("s_mov_b32 s%d, 0x%x" % (s + 2, nbytes))
    A.e("s_mov_b32 s%d, 0x20000" % (s + 3))
```

```python
from asmlib import *
from layout import *

def allreduce_add(A, regs, tmp):
    for sh in (8, 4, 2, 1):
        A.e("s_nop 1")
        for r in regs:
            A.e("v_add_f32_dpp v%d, v%d, v%d row_ror:%d row_mask:0xf bank_mask:0xf" % (r, r, r, sh))
    for op in ("v_permlane16_swap_b32", "v_permlane32_swap_b32"):
        for r, t in zip(regs, tmp):
            A.e("v_mov_b32 v%d, v%d" % (t, r))
        A.e("s_nop 1")
        for r, t in zip(regs, tmp):
            A.e("%s v%d, v%d" % (op, r, t))
        A.e("s_nop 1")
        for r, t in zip(regs, tmp):
            A.e("v_add_f32 v%d, v%d, v%d" % (r, r, t))

def round_bf16(A, r):
    A.e("v_cvt_pk_bf16_f32 v%d, v%d, v%d" % (r, r, r))
    A.e("v_lshlrev_b32 v%d, 16, v%d" % (r, r))

def ln_rows(A, xs, xns, voff):
    A.e("buffer_load_dwordx4 v[4:7], v%d, s[%d:%d], 0 offen" % (voff, xs, xs + 3))
    A.e("buffer_load_dwordx4 v[8:11], v%d, s[%d:%d], 0 offen offset:896" % (voff, xs, xs + 3))
    A.e("s_waitcnt vmcnt(0)")
    rows = [(4, 12, 28, 30, 32), (8, 20, 29, 31, 33)]
    for raw, fl, sm, tp, ax in rows:
        for i in range(4):
            A.e("v_lshlrev_b32 v%d, 16, v%d" % (fl + 2 * i, raw + i))
            A.e("v_and_b32 v%d, 0xffff0000, v%d" % (fl + 2 * i + 1, raw + i))
        A.e("v_add_f32 v%d, v%d, v%d" % (sm, fl, fl + 1))
        for i in range(2, 8):
            A.e("v_add_f32 v%d, v%d, v%d" % (sm, sm, fl + i))
    allreduce_add(A, [28, 29], [30, 31])
    A.e("v_cmp_gt_u32 vcc, 56, v1")
    for raw, fl, sm, tp, ax in rows:
        A.e("v_mul_f32 v%d, 0x3b124925, v%d" % (sm, sm))
        A.e("v_sub_f32 v%d, v%d, v%d" % (tp, fl, sm))
        A.e("v_mul_f32 v%d, v%d, v%d" % (ax, tp, tp))
        for i in range(1, 8):
            A.e("v_sub_f32 v%d, v%d, v%d" % (tp, fl + i, sm))
            A.e("v_fmac_f32 v%d, v%d, v%d" % (ax, tp, tp))
        A.e("v_cndmask_b32 v%d, 0, v%d, vcc" % (ax, ax))
    allreduce_add(A, [32, 33], [30, 31])
    for raw, fl, sm, tp, ax in rows:
        A.e("v_mul_f32 v%d, 0x3b124925, v%d" % (ax, ax))
        round_bf16(A, ax)
        A.e("v_add_f32 v%d, 0x3727c5ac, v%d" % (ax, ax))
        round_bf16(A, ax)
        A.e("v_sqrt_f32 v%d, v%d" % (ax, ax))
        A.e("s_nop 0")
        round_bf16(A, ax)
        round_bf16(A, sm)
        A.e("v_rcp_f32 v%d, v%d" % (tp, ax))
        A.e("s_nop 0")
        for i in range(4):
            a, b = fl + 2 * i, fl + 2 * i + 1
            A.e("v_sub_f32 v%d, v%d, v%d" % (a, a, sm))
            A.e("v_sub_f32 v%d, v%d, v%d" % (b, b, sm))
            A.e("v_cvt_pk_bf16_f32 v34, v%d, v%d" % (a, b))
            A.e("v_lshlrev_b32 v%d, 16, v34" % a)
            A.e("v_and_b32 v%d, 0xffff0000, v34" % b)
            for r in (a, b):
                A.e("v_mul_f32 v35, v%d, v%d" % (r, tp))
                A.e("v_fma_f32 v36, -v35, v%d, v%d" % (ax, r))
                A.e("v_fma_f32 v%d, v36, v%d, v35" % (r, tp))
            A.e("v_cvt_pk_bf16_f32 v%d, v%d, v%d" % (raw + i, a, b))
    A.e("buffer_store_dwordx4 v[4:7], v%d, s[%d:%d], 0 offen" % (voff, xns, xns + 3))
    A.e("buffer_store_dwordx4 v[8:11], v%d, s[%d:%d], 0 offen offset:896" % (voff, xns, xns + 3))

def gen_k0(A, name):
    kernel_begin(A, name)
    A.e("s_cmp_ge_u32 s2, 256\ns_cbranch_scc1 %s_done" % name)
    A.e("s_load_dwordx2 s[4:5], s[0:1], %d" % KA["x"])
    A.e("s_load_dwordx2 s[6:7], s[0:1], %d" % KA["ws"])
    A.e("v_and_b32 v1, 63, v0")
    A.e("v_lshrrev_b32 v2, 6, v0")
    A.e("s_lshl_b32 s3, s2, 3")
    A.e("v_lshl_add_u32 v2, v2, 1, s3")
    A.e("s_movk_i32 s3, 896")
    A.e("v_mul_lo_u32 v2, v2, s3")
    A.e("v_lshl_add_u32 v2, v1, 4, v2")
    A.e("v_cmp_gt_u32 vcc, 56, v1")
    A.e("v_mov_b32 v3, 0x40000000")
    A.e("s_nop 0")
    A.e("v_cndmask_b32 v2, v3, v2, vcc")
    A.e("s_waitcnt lgkmcnt(0)")
    srd(A, 8, 4, 5, S * M * 2)
    A.e("s_add_u32 s6, s6, 0x%x\ns_addc_u32 s7, s7, 0" % XN_OFF)
    srd(A, 12, 6, 7, S * M * 2)
    ln_rows(A, 8, 12, 2)
    A.e("s_cmp_ge_u32 s2, 128\ns_cbranch_scc1 %s_done" % name)
    A.e("s_add_u32 s6, s6, 0x%x\ns_addc_u32 s7, s7, 0" % (FLAG_OFF - XN_OFF))
    srd(A, 12, 6, 7, 128 * 128)
    A.e("s_lshl_b32 s3, s2, 7\nv_mov_b32 v4, 0\nv_lshlrev_b32 v5, 2, v1\nv_cmp_gt_u32 vcc, 1, v0")
    A.e("s_and_saveexec_b64 s[16:17], vcc\ns_cbranch_execz %s_done" % name)
    A.e("buffer_store_dword v4, v5, s[12:15], s3 offen")
    A.label(name + "_done")
    A.e("s_endpgm")

sA, sB, sO = 8, 12, 16
sA2, sB2 = 20, 24
sW = 28
sAcur, sAstr, sAnext = 29, 30, 31
sBg, sBs4, sBs12, sBs32 = 32, 33, 34, 35
sPtr = 36
sAcur2, sAstr2, sAnext2 = 54, 55, 56
sBg2, sBs42, sBs122, sBs322 = 57, 58, 59, 60
sAwr, sRd0, sRd1 = 61, 62, 63
sLeft, sHalf = 64, 65
sT0, sT1, sT2 = 66, 67, 68
sOb1, sOb2 = 69, 70
sTy1, sTy2 = 71, 72
sAw0 = 73
sBw0 = 74
sCurTy = 75
sTile = 76
vL, vDA, vDB, vDA2, vDB2 = 1, 2, 3, 4, 5
vA0b, vA1b, vA0, vA1 = 6, 7, 8, 9
vB = 10
vSt = 14
vStK, vStV = 16, 17
vTmp = 32
FR = 128
A_SLOT = 32768
B_BASE = 3 * A_SLOT
B_SLOT = 16384

def act_frag(s, i): return FR + 64 * s + 4 * i
def wgt_frag(s, i): return FR + 64 * s + 32 + 4 * i
def acc_k(i, j): return 4 * (8 * i + j)

def dma_A(half):
    out = []
    for k in range(4):
        j = 4 * half + k
        g = ["s_add_u32 m0, s%d, %d" % (sAwr, j * 4096),
             "buffer_load_dwordx4 v%d, s[%d:%d], s%d offen lds" % (vDA, sA, sA + 3, sAcur)]
        if j < 7:
            g.append("s_add_u32 s%d, s%d, s%d" % (sAcur, sAcur, sAstr))
        else:
            g.append("s_add_u32 s%d, s%d, s%d" % (sAcur, sAcur, sAnext))
        out.append(g)
    return out

def adv_slot(reg):
    return ["s_add_u32 s%d, s%d, %d" % (reg, reg, A_SLOT),
            "s_cmp_ge_u32 s%d, s%d" % (reg, sT2),
            "s_cselect_b32 s%d, s%d, s%d" % (reg, sT1, reg)]

def dma_B(slot):
    out = []
    rows = [0, 4, 16, 20]
    inc = [sBs4, sBs12, sBs4, sBs12]
    for k in range(4):
        g = ["s_add_u32 m0, s%d, %d" % (sBw0, slot * B_SLOT + rows[k] * 256),
             "buffer_load_dwordx4 v%d, s[%d:%d], s%d offen lds" % (vDB, sB, sB + 3, sBg),
             "s_add_u32 s%d, s%d, s%d" % (sBg, sBg, inc[k])]
        out.append(g)
    return out

def frag_reads(s_next):
    st = s_next % 2
    sub = s_next % 2
    slot = s_next % 4
    va = vA0 if sub == 0 else vA1
    out = []
    for i in range(8):
        out.append("ds_read_b128 %s, v%d offset:%d" % (vr(act_frag(st, i), 4), va, i * 2048))
        o = slot * B_SLOT + (i // 4) * 8192
        w = wgt_frag(st, i)
        out.append("ds_read_b64_tr_b16 %s, v%d offset:%d" % (vr(w, 2), vB + i % 4, o))
        out.append("ds_read_b64_tr_b16 %s, v%d offset:%d" % (vr(w + 2, 2), vB + i % 4, o + 1024))
    return out

def substep(A, s, vtype, first=False):
    st = s % 2
    A.e("s_waitcnt vmcnt(12) lgkmcnt(0)")
    A.e("s_barrier")
    reads = frag_reads(s + 1)
    dA = dma_A(s % 2)
    dB = dma_B(s)
    gaps = [[] for _ in range(64)]
    pre = []
    if (s + 1) % 2 == 0:
        pre = ["v_add_u32 v%d, s%d, v%d" % (vA0, sRd0, vA0b)]
    else:
        pre = ["v_add_u32 v%d, s%d, v%d" % (vA1, sRd1, vA1b)]
    gaps[0] += pre
    ri = 0
    g = 1
    k = 0
    for g in range(1, 33):
        if g % 8 == 2 and k < 4:
            gaps[g] += dA[k][:1]
            gaps[g + 1] += dA[k][1:]
            k += 1
        elif g % 8 == 3:
            pass
        elif ri < len(reads):
            gaps[g].append(reads[ri]); ri += 1
            if g % 2 == 0 and ri < len(reads):
                pass
    g = 33
    kb = 0
    while ri < len(reads):
        gaps[g].append(reads[ri]); ri += 1
        g += 1
    for kb in range(4):
        g0 = 38 + kb * 6
        gaps[g0] += dB[kb][:1]
        gaps[g0 + 1] += dB[kb][1:]
    if (s + 1) % 2 == 0:
        for n, ins in enumerate(adv_slot(sRd0)): gaps[34 + n].append(ins)
    else:
        for n, ins in enumerate(adv_slot(sRd1)): gaps[34 + n].append(ins)
    if s % 2 == 1:
        for n, ins in enumerate(adv_slot_w()): gaps[60 + n].append(ins)
    n = 0
    for i in range(8):
        for j in range(8):
            if vtype:
                a = acc_k(i, j)
                srcA, srcB = act_frag(st, j), wgt_frag(st, i)
            else:
                a = acc_k(i, j)
                srcA, srcB = wgt_frag(st, i), act_frag(st, j)
            c = "0" if first else ar(a, 4)
            A.e("v_mfma_f32_16x16x32_bf16 %s, %s, %s, %s" % (ar(a, 4), vr(srcA, 4), vr(srcB, 4), c))
            for ins in gaps[n]:
                A.e(ins)
            n += 1

def adv_slot_w():
    return ["s_add_u32 s%d, s%d, %d" % (sAwr, sAwr, A_SLOT),
            "s_cmp_ge_u32 s%d, s77" % sAwr,
            "s_cselect_b32 s%d, s%d, s%d" % (sAwr, sAw0, sAwr)]

def switch_params(A, name, tag):
    lab = A.newlabel(name + "_nosw")
    A.e("s_cmp_lg_u32 s%d, 1\ns_cbranch_scc1 %s" % (sLeft, lab))
    A.e("s_mov_b64 s[%d:%d], s[%d:%d]\ns_mov_b64 s[%d:%d], s[%d:%d]" % (sA, sA + 1, sA2, sA2 + 1, sA + 2, sA + 3, sA2 + 2, sA2 + 3))
    A.e("s_mov_b64 s[%d:%d], s[%d:%d]\ns_mov_b64 s[%d:%d], s[%d:%d]" % (sB, sB + 1, sB2, sB2 + 1, sB + 2, sB + 3, sB2 + 2, sB2 + 3))
    for d, s_ in ((sAcur, sAcur2), (sAstr, sAstr2), (sAnext, sAnext2), (sBg, sBg2), (sBs4, sBs42), (sBs12, sBs122)):
        A.e("s_mov_b32 s%d, s%d" % (d, s_))
    A.e("v_mov_b32 v%d, v%d\nv_mov_b32 v%d, v%d" % (vDA, vDA2, vDB, vDB2))
    A.e("s_mov_b32 s%d, 0\ns_mov_b32 s%d, 0" % (sA2 + 2, sB2 + 2))
    A.label(lab)

def epilogue_stores(A, blocks, base_s):
    pass

STORE_FLAGS = ""
NO_STORE = False
def store_out(A, t, va):
    if NO_STORE: return
    A.e("buffer_store_dwordx4 %s, v%d, s[%d:%d], s%d offen %s" % (vr(t, 4), va, sO, sO + 3, sT0, STORE_FLAGS))

def epi_k(A, sbase):
    n = 0
    for j in range(8):
        for p in range(4):
            i = 2 * p
            t = vTmp + 12 * (n % 8)
            for q in range(4):
                A.e("v_accvgpr_read_b32 v%d, a%d" % (t + 4 + q, acc_k(i, j) + q))
                A.e("v_accvgpr_read_b32 v%d, a%d" % (t + 8 + q, acc_k(i + 1, j) + q))
            A.e("v_cvt_pk_bf16_f32 v%d, v%d, v%d" % (t, t + 4, t + 5))
            A.e("v_cvt_pk_bf16_f32 v%d, v%d, v%d" % (t + 1, t + 6, t + 7))
            A.e("v_cvt_pk_bf16_f32 v%d, v%d, v%d" % (t + 2, t + 8, t + 9))
            A.e("v_cvt_pk_bf16_f32 v%d, v%d, v%d" % (t + 3, t + 10, t + 11))
            dstep_rel = (p // 2) * 4 + p % 2
            off = (j // 2) * 16384 + dstep_rel * 2048 + (j % 2) * 256
            A.e("s_add_u32 s%d, s%d, %d" % (sT0, sbase, off))
            store_out(A, t, vStK)
            n += 1

def epi_v(A, sbase):
    n = 0
    for jp in range(4):
        for i in range(8):
            j = 2 * jp
            t = vTmp + 12 * (n % 8)
            for q in range(4):
                A.e("v_accvgpr_read_b32 v%d, a%d" % (t + 4 + q, acc_k(i, j) + q))
                A.e("v_accvgpr_read_b32 v%d, a%d" % (t + 8 + q, acc_k(i, j + 1) + q))
            A.e("v_cvt_pk_bf16_f32 v%d, v%d, v%d" % (t, t + 4, t + 5))
            A.e("v_cvt_pk_bf16_f32 v%d, v%d, v%d" % (t + 1, t + 6, t + 7))
            A.e("v_cvt_pk_bf16_f32 v%d, v%d, v%d" % (t + 2, t + 8, t + 9))
            A.e("v_cvt_pk_bf16_f32 v%d, v%d, v%d" % (t + 3, t + 10, t + 11))
            dt16_rel = (i // 4) * 8 + i % 4
            off = jp * 16384 + (dt16_rel // 2) * 1024 + (dt16_rel % 2) * 256
            A.e("s_add_u32 s%d, s%d, %d" % (sT0, sbase, off))
            store_out(A, t, vStV)
            n += 1

def epi_gu(A, sbase):
    n = 0
    for j in range(8):
        for p in range(2):
            t = vTmp + 20 * (n % 4)
            for h in range(2):
                i = 2 * p + h
                for q in range(4):
                    A.e("v_accvgpr_read_b32 v%d, a%d" % (t + 4 + 4 * h + q, acc_k(i, j) + q))
                    A.e("v_accvgpr_read_b32 v%d, a%d" % (t + 12 + 4 * h + q, acc_k(i + 4, j) + q))
            for q in range(8):
                A.e("v_mul_f32 v%d, v%d, v%d" % (t + 4 + q, t + 4 + q, t + 12 + q))
            for q in range(4):
                A.e("v_cvt_pk_bf16_f32 v%d, v%d, v%d" % (t + q, t + 4 + 2 * q, t + 5 + 2 * q))
            off = j * ACT_KS * 1024 + p * 1024
            A.e("s_add_u32 s%d, s%d, %d" % (sT0, sbase, off))
            store_out(A, t, vSt)
            n += 1

STAMP = False
STAMP_WG = 0
def stamp(A, n):
    if not STAMP: return
    A.e("s_memtime s[98:99]\ns_memrealtime s[100:101]\ns_waitcnt lgkmcnt(0)")
    A.e("v_writelane_b32 v15, s98, %d\nv_writelane_b32 v15, s100, %d" % (2 * n, 2 * n + 1))

def stamp_flush(A, wg, dbg_ptr_off):
    if not STAMP: return
    lab = A.newlabel("nostamp")
    A.e("s_cmp_lg_u32 s2, %d\ns_cbranch_scc1 %s" % (wg, lab))
    A.e("s_cmp_lg_u32 s%d, 0\ns_cbranch_scc1 %s" % (sW, lab))
    A.e("s_load_dwordx2 s[98:99], s[0:1], %d\ns_waitcnt lgkmcnt(0)" % dbg_ptr_off)
    srd(A, 92, 98, 99, 256)
    A.e("v_lshlrev_b32 v16, 2, v%d" % vL)
    A.e("buffer_store_dword v15, v16, s[92:95], 0 offen")
    A.label(lab)

def gen_k1(A, name):
    kernel_begin(A, name)
    A.e("s_cmp_ge_u32 s2, 256\ns_cbranch_scc1 %s_done" % name)
    A.e("s_load_dwordx16 s[36:51], s[0:1], 8")
    A.e("s_load_dwordx2 s[52:53], s[0:1], %d" % KA["ws"])
    P = dict(ckv=36, wq=38, wuk=40, wuv=42, wo=44, bx=46, wg=48, wu=50, ws=52)
    A.e("v_and_b32 v%d, 63, v0" % vL)
    if STAMP: A.e("v_mov_b32 v15, 0")
    stamp(A, 0)
    A.e("v_lshrrev_b32 v14, 6, v0\ns_nop 0\nv_readfirstlane_b32 s%d, v14" % sW)
    A.e("s_and_b32 s80, s2, 7")
    A.e("s_lshr_b32 s81, s2, 3")
    A.e("s_lshr_b32 s%d, s81, 4" % sTy1)
    A.e("s_bfe_u32 s82, s81, 0x10003")
    A.e("s_and_b32 s83, s81, 7")
    A.e("s_lshl_b32 s84, s80, 1\ns_add_u32 s84, s84, s82")
    A.e("s_and_b32 s85, s%d, 1" % sW)
    A.e("s_lshr_b32 s86, s%d, 1" % sW)
    A.e("s_cmp_lt_u32 s81, 16\ns_cselect_b32 s%d, 0, 1" % sTy2)
    A.e("s_cmp_lt_u32 s81, 30\ns_cselect_b32 s%d, s%d, 2" % (sTy2, sTy2))
    A.e("s_mul_i32 s87, s80, 14\ns_add_u32 s87, s87, s81\ns_sub_u32 s87, s87, 16")
    A.e("s_lshr_b32 s88, s87, 3")
    A.e("s_and_b32 s89, s87, 7")
    A.e("s_cmp_eq_u32 s%d, 0\ns_cselect_b32 s89, s83, s89" % sTy2)
    A.e("s_waitcnt lgkmcnt(0)")
    srd(A, sA, P["ckv"], P["ckv"] + 1, S * DC * 2)
    A.e("s_cmp_eq_u32 s%d, 0" % sTy1)
    A.e("s_cselect_b32 s90, s%d, s%d\ns_cselect_b32 s91, s%d, s%d" % (P["wuk"], P["wuv"], P["wuk"] + 1, P["wuv"] + 1))
    srd(A, sB, 90, 91, DC * H * D * 2)
    srd(A, sO, P["ws"], P["ws"] + 1, WS_SIZE)
    A.e("s_add_u32 s90, s%d, 0x%x\ns_addc_u32 s91, s%d, 0" % (P["ws"], XN_OFF, P["ws"] + 1))
    srd(A, sA2, 90, 91, S * M * 2)
    A.e("s_cmp_eq_u32 s86, 0")
    A.e("s_cselect_b32 s90, s%d, s%d\ns_cselect_b32 s91, s%d, s%d" % (P["wg"], P["wu"], P["wg"] + 1, P["wu"] + 1))
    A.e("s_cmp_eq_u32 s%d, 0" % sTy2)
    A.e("s_cselect_b32 s90, s%d, s90\ns_cselect_b32 s91, s%d, s91" % (P["wq"], P["wq"] + 1))
    srd(A, sB2, 90, 91, M * F * 2)
    A.e("s_cmp_eq_u32 s%d, 0" % sTy2)
    A.e("s_cselect_b32 s%d, 0x%x, s%d" % (sB2 + 2, M * H * D * 2, sB2 + 2))
    A.e("s_cmp_eq_u32 s%d, 2" % sTy2)
    A.e("s_cselect_b32 s%d, 0, s%d\ns_cselect_b32 s%d, 0, s%d" % (sA2 + 2, sA2 + 2, sB2 + 2, sB2 + 2))
    A.e("s_mov_b32 s%d, %d\ns_mov_b32 s%d, %d" % (sAstr, 32 * 2048, sAnext, (128 - 7 * 32 * 2048) & 0xffffffff))
    A.e("s_mov_b32 s%d, %d\ns_mov_b32 s%d, %d" % (sAstr2, 32 * 896, sAnext2, (128 - 7 * 32 * 896) & 0xffffffff))
    A.e("s_mov_b32 s%d, %d\ns_mov_b32 s%d, %d" % (sBs4, 4 * 8192, sBs12, 12 * 8192))
    A.e("s_movk_i32 s92, 3584\ns_cmp_eq_u32 s%d, 0\ns_cselect_b32 s92, 8192, s92" % sTy2)
    A.e("s_lshl_b32 s%d, s92, 2\ns_mul_i32 s%d, s92, 12" % (sBs42, sBs122))
    A.e("s_lshl_b32 s93, s86, 4\ns_lshl_b32 s94, s85, 3\ns_add_u32 s93, s93, s94")
    A.e("s_lshl_b32 s94, s83, 8\ns_add_u32 s94, s94, s93\ns_lshl_b32 s%d, s94, 11" % sAcur)
    A.e("s_lshl_b32 s94, s89, 8\ns_add_u32 s94, s94, s93\ns_mul_i32 s%d, s94, 896" % sAcur2)
    A.e("s_lshl_b32 s%d, s93, 7" % sAw0)
    A.e("s_mov_b32 s%d, s%d" % (sAwr, sAw0))
    A.e("s_add_u32 s77, s%d, %d" % (sAw0, 3 * A_SLOT))
    A.e("s_lshl_b32 s94, s85, 16")
    A.e("s_lshl_b32 s95, s84, 9\ns_lshl_b32 s96, s86, 8\ns_add_u32 s95, s95, s96")
    A.e("s_add_u32 s%d, s94, s95" % sBg)
    A.e("s_lshl_b32 s94, s85, 3\ns_mul_i32 s94, s94, s92")
    A.e("s_lshl_b32 s96, s88, 8")
    A.e("s_cmp_eq_u32 s%d, 0\ns_cselect_b32 s95, s95, s96" % sTy2)
    A.e("s_add_u32 s%d, s94, s95" % sBg2)
    A.e("s_lshl_b32 s94, s86, 13\ns_lshl_b32 s95, s85, 11\ns_add_u32 s94, s94, s95\ns_add_u32 s%d, s94, %d" % (sBw0, B_BASE))
    A.e("s_lshl_b32 s94, s84, 6\ns_lshl_b32 s95, s83, 3\ns_add_u32 s94, s94, s95\ns_lshl_b32 s95, s85, 2\ns_add_u32 s94, s94, s95")
    A.e("s_lshl_b32 s94, s94, 14")
    A.e("s_lshl_b32 s95, s86, 12\ns_add_u32 s96, s94, s95\ns_add_u32 s98, s96, 0x%x\ns_add_u32 s96, s96, 0x%x" % (Q_OFF, K_OFF))
    A.e("s_lshl_b32 s95, s86, 11\ns_add_u32 s97, s94, s95\ns_add_u32 s97, s97, 0x%x" % V_OFF)
    A.e("s_cmp_eq_u32 s%d, 0\ns_cselect_b32 s%d, s96, s97" % (sTy1, sOb1))
    A.e("s_mov_b32 s96, s98")
    A.e("s_lshl_b32 s97, s89, 4\ns_lshl_b32 s95, s85, 3\ns_add_u32 s97, s97, s95\ns_mul_i32 s97, s97, %d" % ACT_KS)
    A.e("s_lshl_b32 s95, s88, 2\ns_add_u32 s97, s97, s95\ns_lshl_b32 s95, s86, 1\ns_add_u32 s97, s97, s95\ns_add_u32 s97, s97, 128")
    A.e("s_lshl_b32 s97, s97, 10\ns_add_u32 s97, s97, 0x%x" % ACT_OFF)
    A.e("s_cmp_eq_u32 s%d, 0\ns_cselect_b32 s%d, s96, s97" % (sTy2, sOb2))
    A.e("v_lshrrev_b32 v20, 3, v%d" % vL)
    A.e("v_lshrrev_b32 v21, 4, v%d" % vL)
    A.e("s_lshl_b32 s94, s85, 2")
    A.e("v_add_u32 v22, s94, v21")
    A.e("v_and_b32 v23, 7, v%d" % vL)
    A.e("v_xor_b32 v23, v23, v22")
    A.e("v_lshlrev_b32 v23, 4, v23")
    A.e("v_lshl_add_u32 v%d, v20, 11, v23" % vDA)
    A.e("s_movk_i32 s94, 896")
    A.e("v_mul_lo_u32 v24, v20, s94")
    A.e("v_add_u32 v%d, v24, v23" % vDA2)
    A.e("v_and_b32 v23, 15, v%d" % vL)
    A.e("v_lshlrev_b32 v24, 1, v22")
    A.e("v_xor_b32 v23, v23, v24")
    A.e("v_lshlrev_b32 v23, 4, v23")
    A.e("v_lshl_add_u32 v%d, v21, 13, v23" % vDB)
    A.e("v_mul_lo_u32 v24, v21, s92")
    A.e("v_add_u32 v%d, v24, v23" % vDB2)
    A.e("v_and_b32 v20, 15, v%d" % vL)
    A.e("v_lshrrev_b32 v22, 1, v20")
    A.e("v_xor_b32 v23, v21, v22")
    A.e("s_lshl_b32 s94, s85, 14")
    A.e("v_lshlrev_b32 v24, 7, v20")
    A.e("v_add_u32 v24, s94, v24")
    A.e("v_lshl_add_u32 v%d, v23, 4, v24" % vA0b)
    A.e("v_xor_b32 v%d, 64, v%d" % (vA1b, vA0b))
    A.e("v_lshrrev_b32 v22, 2, v20")
    A.e("v_and_b32 v23, 3, v%d" % vL)
    A.e("v_and_b32 v24, 1, v21")
    A.e("v_lshl_or_b32 v24, v24, 2, v22")
    A.e("v_lshl_add_u32 v25, v21, 3, v22")
    A.e("v_lshlrev_b32 v25, 8, v25")
    A.e("v_lshl_add_u32 v25, v23, 3, v25")
    A.e("v_add_u32 v25, %d, v25" % B_BASE)
    A.e("s_lshl_b32 s94, s86, 2")
    for tl in range(4):
        A.e("s_add_u32 s95, s94, %d" % tl)
        A.e("v_xor_b32 v26, s95, v24")
        A.e("v_lshl_add_u32 v%d, v26, 5, v25" % (vB + tl))
    A.e("v_lshlrev_b32 v%d, 4, v%d" % (vSt, vL))
    A.e("v_lshlrev_b32 v22, 4, v20")
    A.e("v_lshl_add_u32 v%d, v21, 9, v22" % vStK)
    A.e("v_lshrrev_b32 v23, 1, v21\nv_and_b32 v24, 1, v21")
    A.e("v_lshl_add_u32 v22, v23, 13, v22")
    A.e("v_lshl_add_u32 v%d, v24, 9, v22" % vStV)
    A.e("s_mov_b32 s%d, 0\ns_mov_b32 s%d, %d" % (sT1, sT2, 3 * A_SLOT))
    A.e("s_mov_b32 s%d, 0\ns_mov_b32 s%d, 0" % (sRd0, sRd1))
    for s in range(4):
        for g in dma_A(s % 2):
            A.e(g[0]); A.e("s_nop 0"); A.e(g[1]); A.e(g[2])
        if s % 2 == 1:
            for ins in adv_slot_w(): A.e(ins)
        for g in dma_B(s):
            A.e(g[0]); A.e("s_nop 0"); A.e(g[1]); A.e(g[2])
    stamp(A, 1)
    A.e("s_waitcnt vmcnt(20)\ns_barrier")
    stamp(A, 2)
    A.e("v_add_u32 v%d, s%d, v%d" % (vA0, sRd0, vA0b))
    for ins in adv_slot(sRd0): A.e(ins)
    for ins in frag_reads(0): A.e(ins)
    A.e("s_mov_b32 s%d, 8\ns_mov_b32 s%d, 0\ns_mov_b32 s%d, 0" % (sLeft, sHalf, sTile))
    A.e("s_mov_b32 s%d, s%d" % (sCurTy, sTy1))
    A.e("s_cmp_eq_u32 s%d, 1\ns_cbranch_scc1 %s_first1" % (sCurTy, name))
    for vt in (0, 1):
        A.label("%s_first%d" % (name, vt))
        switch_params(A, name, "f")
        substep(A, 0, vt, first=True)
        A.e("s_branch %s_L1_%d" % (name, vt))
        A.e(".p2align 6")
        A.label("%s_L0_%d" % (name, vt))
        switch_params(A, name, "l")
        substep(A, 0, vt)
        A.label("%s_L1_%d" % (name, vt))
        substep(A, 1, vt)
        if vt == 0:
            lab = A.newlabel(name + "_nohalf")
            A.e("s_cmp_eq_u32 s%d, 1\ns_cbranch_scc0 %s" % (sHalf, lab))
            A.e("s_cmp_eq_u32 s%d, 1\ns_cbranch_scc1 %s_epi" % (sLeft, name))
            A.label(lab)
        substep(A, 2, vt)
        substep(A, 3, vt)
        A.e("s_sub_u32 s%d, s%d, 1\ns_cmp_lg_u32 s%d, 0\ns_cbranch_scc1 %s_L0_%d" % (sLeft, sLeft, sLeft, name, vt))
        A.e("s_branch %s_epi" % name)
    A.label(name + "_epi")
    A.e("s_nop 7\ns_nop 1")
    A.e("s_cmp_eq_u32 s%d, 1\ns_cbranch_scc1 %s_epi2" % (sTile, name))
    stamp(A, 3)
    A.e("s_cmp_eq_u32 s%d, 1\ns_cbranch_scc1 %s_epi_v" % (sTy1, name))
    epi_k(A, sOb1)
    A.e("s_branch %s_next" % name)
    A.label(name + "_epi_v")
    epi_v(A, sOb1)
    A.label(name + "_next")
    stamp(A, 4)
    A.e("s_cmp_eq_u32 s%d, 2\ns_cbranch_scc1 %s_fin" % (sTy2, name))
    A.e("s_mov_b32 s%d, 4\ns_mov_b32 s%d, 1\ns_mov_b32 s%d, 1" % (sLeft, sHalf, sTile))
    A.e("s_branch %s_first0" % name)
    A.label(name + "_epi2")
    stamp(A, 5)
    A.e("s_cmp_eq_u32 s%d, 1\ns_cbranch_scc1 %s_epi_gu" % (sTy2, name))
    epi_k(A, sOb2)
    A.e("s_branch %s_fin" % name)
    A.label(name + "_epi_gu")
    epi_gu(A, sOb2)
    A.label(name + "_fin")
    stamp(A, 6)
    A.e("s_waitcnt vmcnt(0) lgkmcnt(0)")
    stamp(A, 7)
    stamp_flush(A, STAMP_WG, KA["dbg"])
    A.e("s_waitcnt vmcnt(0)")
    A.label(name + "_done")
    A.e("s_endpgm")
```

```python
from asmlib import *
from layout import *

UNIT = 16384
NSLOT = 5
K_RING = 0
V_RING = NSLOT * UNIT
sWS = 4
sW, sH, sP, sRole = 8, 9, 10, 11
sKoff, sVoff, sKrem, sVrem = 12, 13, 14, 15
sK2off, sV2off, sN2rem = 16, 17, 18
sKw, sVw, sKr, sVr = 19, 20, 21, 22
sLeft = 23
sQt = 24
sHb = 25
sC, sThr = 26, 27
sNb = 28
sRet = 30
sT0, sT1, sT2, sT3 = 32, 33, 34, 35
sSeg = 36
sMode = 37
sFirst = 38
sW4k = 39
sMaskFrom = 40
sSegN = 41
sSegHb0 = 42
sOOB = 43
sKwEnd, sVwEnd = 44, 45
sQoff = 46
sPH = 47
sV2rem = 48
sMsk = 50
vLane16, vKb, vVb, vNb = 1, 2, 3, 4
vM, vMc, vL, vSum, vSum2 = 5, 6, 7, 8, 9
vBase = 10
vThr = 11
vStC = 12
vLn = 13
vS = [16, 32]
vP = [48, 56]
vT = 64
vX = 80
vO = 128
aQ = 0
aF = 64
NF = 8

STAMP = False
EXP = set()
STAMP_WG = 0
def stamp(A, n):
    if not STAMP: return
    A.e("s_waitcnt lgkmcnt(0)\ns_memtime s[98:99]\ns_memrealtime s[100:101]\ns_waitcnt lgkmcnt(0)")
    A.e("v_writelane_b32 v15, s98, %d\nv_writelane_b32 v15, s100, %d" % (2 * n, 2 * n + 1))

def frag(i): return ar(aF + 4 * (i % NF), 4)

def dma_unit(which):
    if which == "K": off, rem, wr, end, off2, rem2, ring = sKoff, sKrem, sKw, sKwEnd, sK2off, sN2rem, K_RING
    else: off, rem, wr, end, off2, rem2, ring = sVoff, sVrem, sVw, sVwEnd, sV2off, sV2rem, V_RING
    g = []
    g.append(["s_mov_b32 m0, s%d" % wr, "s_nop 0"])
    for i in range(4):
        g.append(["buffer_load_dwordx4 v%d, s[%d:%d], s%d offen offset:%d lds" % (vLane16, sWS, sWS + 3, off, i * 1024)])
    g.append(["s_add_u32 s%d, s%d, %d" % (wr, wr, UNIT), "s_cmp_ge_u32 s%d, s%d" % (wr, end)])
    g.append(["s_cselect_b32 s%d, %d, 0" % (sT3, NSLOT * UNIT), "s_sub_u32 s%d, s%d, s%d" % (wr, wr, sT3)])
    g.append(["s_add_u32 s%d, s%d, %d" % (off, off, UNIT), "s_sub_u32 s%d, s%d, 1" % (rem, rem)])
    g.append(["s_cmp_eq_u32 s%d, 0" % rem, "s_cselect_b32 s%d, s%d, s%d" % (off, off2, off)])
    g.append(["s_cselect_b32 s%d, s%d, s%d" % (rem, rem2, rem), "s_cselect_b32 s%d, s%d, s%d" % (off2, sOOB, off2)])
    g.append(["s_cselect_b32 s%d, s%d, s%d" % (rem2, sOOB, rem2)])
    return g

def adv_ring(reg, base):
    return [["s_add_u32 s%d, s%d, %d" % (reg, reg, UNIT), "s_cmp_ge_u32 s%d, %d" % (reg, base + NSLOT * UNIT)],
            ["s_cselect_b32 s%d, %d, s%d" % (reg, base, reg)]]

def sm_fast(par):
    S, P = vS[par], vP[par]
    out = []
    seq = []
    for e in range(16):
        t = vT + e % 8
        seq.append(("fma", "v_fma_f32 v%d, v%d, s%d, -v%d" % (t, S + e, sC, vMc)))
    res = []
    for e in range(16 + 3):
        if e < 16:
            res.append("v_fma_f32 v%d, v%d, s%d, -v%d" % (vT + e % 8, S + e, sC, vMc))
        if 0 <= e - 1 < 16:
            t = vT + (e - 1) % 8
            res.append("v_exp_f32 v%d, v%d" % (t, t))
        if 0 <= e - 3 < 16:
            k = e - 3
            t = vT + k % 8
            acc = vSum if k % 2 == 0 else vSum2
            if k < 2: res.append("v_mov_b32 v%d, v%d" % (acc, t))
            else: res.append("v_add_f32 v%d, v%d, v%d" % (acc, acc, t))
            if k % 2 == 1:
                pr = k // 2
                R = pr // 2
                preg = P + 4 * (R % 2) + 2 * (R // 2) + pr % 2
                res.append("v_cvt_pk_bf16_f32 v%d, v%d, v%d" % (preg, vT + (k - 1) % 8, t))
    res.append("v_add_f32 v%d, v%d, v%d" % (vSum, vSum, vSum2))
    return res

def emit_period(A, name, kind, par):
    has_qk = kind in ("M1", "Z", "ST")
    has_pv = kind in ("ST", "L1", "L2")
    has_sm = kind in ("ST", "L1")
    has_dma = kind in ("Z", "ST", "L1")
    mf = []
    if has_qk: mf += [("qk", i) for i in range(16)]
    if has_pv: mf += [("pv", i) for i in range(16)]
    n = len(mf)
    if has_qk: A.e("v_add_u32 v%d, s%d, v%d" % (vKb, sKr, vLane16))
    if has_pv: A.e("v_add_u32 v%d, s%d, v%d" % (vVb, sVr, vLane16))
    if kind in ("ST", "L1", "Z"):
        lab = A.newlabel(name + "_nomask")
        A.e("s_cmp_lt_u32 s%d, s%d\ns_cbranch_scc1 %s" % (sHb, sMaskFrom, lab))
        A.e("s_call_b64 s[%d:%d], %s_mask%d" % (sRet, sRet + 1, name, par))
        A.label(lab)
    gaps = [[] for _ in range(n + 1)]
    fill = []
    if has_dma:
        fill += dma_unit("K") + dma_unit("V")
    post = []
    if has_qk: post += adv_ring(sKr, K_RING)
    if has_pv: post += adv_ring(sVr, V_RING)
    if kind == "M1": nb = [["s_mov_b32 s%d, s%d" % (sNb, sKr)]]
    elif kind in ("Z", "ST"):
        nb = [["s_cmp_eq_u32 s%d, 0" % sLeft, "s_cselect_b32 s%d, s%d, s%d" % (sNb, sVr, sKr)]]
    elif kind == "L1": nb = [["s_mov_b32 s%d, s%d" % (sNb, sVr)]]
    else: nb = [["s_mov_b32 s%d, s%d" % (sNb, sKr)]]
    nb.append(["v_add_u32 v%d, s%d, v%d" % (vNb, sNb, vLane16)])
    bar = n - 8
    sc = fill + post + nb
    per = max(1, (len(sc) + bar - 1) // bar)
    gi = 0
    for k, grp in enumerate(sc):
        gaps[min(bar - 1, (k * bar) // len(sc))] += grp
    if has_sm:
        sm = sm_fast(par)
        for k, ins in enumerate(sm):
            gaps[(k * n) // len(sm)].append(ins)
    for i, (k, idx) in enumerate(mf):
        if i == bar:
            if n == 16 and has_qk: A.e("s_waitcnt vmcnt(16) lgkmcnt(0)")
            else: A.e("s_waitcnt vmcnt(16)")
            A.e("s_barrier")
        if "w2" in EXP:
            if i % 2 == 0: A.e("s_waitcnt lgkmcnt(6)")
        elif "w4" in EXP:
            if i % 4 == 0: A.e("s_waitcnt lgkmcnt(4)")
        else:
            A.e("s_waitcnt lgkmcnt(7)")
        if k == "qk":
            d = vr(vS[par ^ 1], 16)
            c = "0" if idx == 0 else d
            A.e("v_mfma_f32_32x32x16_bf16 %s, %s, %s, %s" % (d, frag(i), ar(aQ + 4 * idx, 4), c))
        else:
            a, dt = idx // 8, idx % 8
            d = vr(vO + 16 * dt, 16)
            A.e("v_mfma_f32_32x32x16_bf16 %s, %s, %s, %s" % (d, frag(i), vr(vP[par ^ 1] + 4 * a, 4), d))
        j = i + 8
        if "nods" in EXP and kind == "ST": pass
        elif j < n:
            kk, jidx = mf[j]
            A.e("ds_read_b128 %s, v%d offset:%d" % (frag(j), vKb if kk == "qk" else vVb, jidx * 1024))
        else:
            A.e("ds_read_b128 %s, v%d offset:%d" % (frag(j), vNb, (j - n) * 1024))
        for ins in gaps[i]:
            if kind == "ST":
                if "nodma" in EXP and ins.startswith("buffer_load"): continue
                if "novalu" in EXP and ins.startswith("v_") and not ins.startswith("v_add_u32"): continue
                if "noexp" in EXP and ins.startswith("v_exp"): continue
                if "nosalu" in EXP and ins.startswith("s_") and "m0" not in ins and ("s%d," % sKr) not in ins and ("s%d," % sVr) not in ins and ("s%d," % sNb) not in ins and ("s%d, 0" % sLeft) not in ins: continue
            A.e(ins)
    if has_sm:
        lab = A.newlabel(name + "_ok")
        A.e("v_cmp_nle_f32 vcc, v%d, v%d" % (vSum, vThr))
        if EXP & {"novalu", "noexp", "nodma", "nosalu", "nods"}: A.e("s_branch %s" % lab)
        A.e("s_cbranch_vccz %s" % lab)
        A.e("s_mov_b32 s%d, 0" % sFirst)
        A.e("s_call_b64 s[%d:%d], %s_fb%d" % (sRet, sRet + 1, name, par))
        A.label(lab)
        A.e("v_add_f32 v%d, v%d, v%d" % (vL, vL, vSum))
    if kind == "Z":
        A.e("s_mov_b32 s%d, 1" % sFirst)
        A.e("s_call_b64 s[%d:%d], %s_fb%d" % (sRet, sRet + 1, name, par))
        A.e("v_mov_b32 v%d, v%d" % (vL, vSum))
    if kind in ("Z", "ST", "L1"):
        A.e("s_add_u32 s%d, s%d, 1" % (sHb, sHb))

def emit_mask(A, name, par):
    A.label("%s_mask%d" % (name, par))
    S = vS[par]
    A.e("s_add_u32 s%d, s%d, s%d\ns_sub_u32 s%d, s%d, s%d\ns_lshl_b32 s%d, s%d, 5" % (sT0, sMaskFrom, sW, sT0, sT0, sHb, sT0, sT0))
    A.e("s_nop 7")
    A.e("v_sub_u32 v%d, s%d, v%d" % (vT, sT0, vBase))
    A.e("v_mov_b32 v%d, 0xf1800000" % (vT + 1))
    for r0 in range(0, 16, 4):
        for r in range(r0, r0 + 4):
            c = 8 * (r // 4) + r % 4
            A.e("v_cmp_gt_i32 s[%d:%d], %d, v%d" % (sMsk + 2 * (r - r0), sMsk + 2 * (r - r0) + 1, c, vT))
        for r in range(r0, r0 + 4):
            A.e("v_cndmask_b32 v%d, v%d, v%d, s[%d:%d]" % (S + r, S + r, vT + 1, sMsk + 2 * (r - r0), sMsk + 2 * (r - r0) + 1))
    A.e("s_setpc_b64 s[%d:%d]" % (sRet, sRet + 1))

def emit_fallback(A, name, par):
    A.label("%s_fb%d" % (name, par))
    S, P = vS[par], vP[par]
    t = vT
    A.e("v_max3_f32 v%d, v%d, v%d, v%d" % (t, S, S + 1, S + 2))
    for e in range(3, 15, 2):
        A.e("v_max3_f32 v%d, v%d, v%d, v%d" % (t, t, S + e, S + e + 1))
    A.e("v_max_f32 v%d, v%d, v%d" % (t, t, S + 15))
    A.e("v_mov_b32 v%d, v%d\ns_nop 1" % (t + 1, t))
    A.e("v_permlane32_swap_b32 v%d, v%d\ns_nop 1" % (t, t + 1))
    A.e("v_max3_f32 v%d, v%d, v%d, v%d" % (t, t, t + 1, vM))
    A.e("v_sub_f32 v%d, v%d, v%d" % (t + 1, vM, t))
    A.e("v_mul_f32 v%d, s%d, v%d" % (t + 1, sC, t + 1))
    A.e("v_exp_f32 v%d, v%d" % (t + 1, t + 1))
    A.e("v_mov_b32 v%d, v%d" % (vM, t))
    A.e("v_mul_f32 v%d, s%d, v%d" % (vMc, sC, vM))
    A.e("s_nop 15")
    lab1 = A.newlabel(name + "_fbz"); lab2 = A.newlabel(name + "_fbd")
    A.e("s_cmp_eq_u32 s%d, 1\ns_cbranch_scc1 %s" % (sFirst, lab1))
    for r in range(128):
        A.e("v_mul_f32 v%d, v%d, v%d" % (vO + r, vO + r, t + 1))
    A.e("v_mul_f32 v%d, v%d, v%d" % (vL, vL, t + 1))
    A.e("s_branch %s" % lab2)
    A.label(lab1)
    for r in range(128):
        A.e("v_mov_b32 v%d, 0" % (vO + r))
    A.label(lab2)
    for ins in sm_fast(par): A.e(ins)
    A.e("s_setpc_b64 s[%d:%d]" % (sRet, sRet + 1))

def load_q(A):
    for i in range(16):
        if i % 4 == 0:
            A.e("s_add_u32 s%d, s%d, %d" % (sT0, sQoff, i * 1024))
        A.e("buffer_load_dwordx4 %s, v%d, s[%d:%d], s%d offen offset:%d" % (ar(aQ + 4 * i, 4), vLane16, sWS, sWS + 3, sT0, (i % 4) * 1024))

def pack_tile(A, dt, a, dst, scale):
    o = vO + 16 * dt
    regs = [o + 4 * a + q for q in range(4)] + [o + 4 * (a + 2) + q for q in range(4)]
    for q, r in enumerate(regs):
        A.e("v_mul_f32 v%d, v%d, v%d" % (vT + q, r, scale))
    for q in range(4):
        A.e("v_cvt_pk_bf16_f32 v%d, v%d, v%d" % (dst + q, vT + 2 * q, vT + 2 * q + 1))

def seg_setup(A):
    A.e("s_lshl_b32 s%d, s%d, 2" % (sMaskFrom, sQt))
    A.e("s_lshl_b32 s%d, s%d, 6\ns_add_u32 s%d, s%d, s%d\ns_add_u32 s%d, s%d, s%d" % (sT0, sH, sT0, sT0, sMaskFrom, sT0, sT0, sW))
    A.e("s_lshl_b32 s%d, s%d, 14\ns_add_u32 s%d, s%d, 0x%x" % (sT0, sT0, sQoff, sT0, Q_OFF))
    A.e("s_mov_b32 s%d, s%d" % (sHb, sSegHb0))
    A.e("s_sub_u32 s%d, s%d, 2\ns_lshr_b32 s%d, s%d, 1" % (sLeft, sSegN, sLeft, sLeft))

def gen_k2(A, name):
    kernel_begin(A, name)
    A.e("s_cmp_ge_u32 s2, 256\ns_cbranch_scc1 %s_done" % name)
    A.e("s_load_dwordx2 s[60:61], s[0:1], %d" % KA["ws"])
    A.e("v_and_b32 v%d, 63, v0" % vLn)
    if STAMP: A.e("v_mov_b32 v15, 0")
    A.e("v_lshrrev_b32 v14, 6, v0\ns_nop 0\nv_readfirstlane_b32 s%d, v14" % sW)
    A.e("v_lshlrev_b32 v%d, 4, v%d" % (vLane16, vLn))
    A.e("s_and_b32 s62, s2, 7\ns_lshr_b32 s63, s2, 3")
    A.e("s_lshr_b32 s64, s63, 4\ns_lshl_b32 s%d, s62, 1\ns_add_u32 s%d, s%d, s64" % (sH, sH, sH))
    A.e("s_bfe_u32 s%d, s63, 0x30001\ns_and_b32 s%d, s63, 1" % (sP, sRole))
    A.e("s_lshl_b32 s%d, s%d, 3\ns_add_u32 s%d, s%d, s%d" % (sPH, sH, sPH, sPH, sP))
    A.e("s_lshl_b32 s%d, s%d, 12" % (sW4k, sW))
    A.e("s_mov_b32 s%d, 0x3db8aa3b" % sC)
    A.e("s_mov_b32 s%d, 0x7fff0000" % sOOB)
    A.e("v_mov_b32 v%d, 0x4f800000" % vThr)
    A.e("v_lshrrev_b32 v14, 5, v%d\nv_lshlrev_b32 v14, 2, v14\nv_and_b32 v16, 31, v%d\nv_sub_u32 v%d, v14, v16" % (vLn, vLn, vBase))
    A.e("v_bfe_u32 v14, v%d, 4, 1\ns_mov_b32 s64, %d\nv_mul_lo_u32 v14, v14, s64" % (vLn, ACT_KS * 1024))
    A.e("v_lshrrev_b32 v16, 5, v%d\nv_lshl_add_u32 v14, v16, 8, v14\nv_and_b32 v16, 15, v%d\nv_lshl_add_u32 v%d, v16, 4, v14" % (vLn, vLn, vStC))
    A.e("s_sub_u32 s65, 15, s%d" % sP)
    A.e("s_mov_b32 s%d, s65" % sQt)
    A.e("s_lshl_b32 s66, s65, 2\ns_add_u32 s66, s66, 4\ns_sub_u32 s66, s66, 34")
    A.e("s_lshl_b32 s67, s%d, 2\ns_add_u32 s67, s67, 4" % sP)
    A.e("s_cmp_eq_u32 s%d, 0" % sRole)
    A.e("s_cselect_b32 s%d, 0, 34\ns_cselect_b32 s%d, 34, s66\ns_cselect_b32 s%d, 2, 1" % (sSegHb0, sSegN, sMode))
    A.e("s_cselect_b32 s68, s%d, s67" % sOOB)
    A.e("s_waitcnt lgkmcnt(0)")
    srd(A, sWS, 60, 61, WS_SIZE)
    A.e("s_lshl_b32 s69, s%d, 20\ns_add_u32 s69, s69, s%d" % (sH, sW4k))
    A.e("s_lshl_b32 s70, s%d, 14\ns_add_u32 s70, s70, s69" % sSegHb0)
    A.e("s_add_u32 s%d, s70, 0x%x\ns_add_u32 s%d, s70, 0x%x" % (sKoff, K_OFF, sVoff, V_OFF))
    A.e("s_add_u32 s%d, s69, 0x%x\ns_add_u32 s%d, s69, 0x%x" % (sK2off, K_OFF, sV2off, V_OFF))
    A.e("s_cmp_eq_u32 s%d, 0" % sRole)
    A.e("s_cselect_b32 s%d, s%d, s%d\ns_cselect_b32 s%d, s%d, s%d" % (sK2off, sOOB, sK2off, sV2off, sOOB, sV2off))
    A.e("s_mov_b32 s%d, s%d\ns_mov_b32 s%d, s%d" % (sKrem, sSegN, sVrem, sSegN))
    A.e("s_mov_b32 s%d, s68\ns_mov_b32 s%d, s68" % (sN2rem, sV2rem))
    A.e("s_add_u32 s%d, s%d, %d\ns_add_u32 s%d, s%d, %d" % (sKw, sW4k, K_RING, sVw, sW4k, V_RING))
    A.e("s_add_u32 s%d, s%d, %d\ns_add_u32 s%d, s%d, %d" % (sKwEnd, sKw, NSLOT * UNIT, sVwEnd, sVw, NSLOT * UNIT))
    A.e("s_mov_b32 s%d, %d\ns_mov_b32 s%d, %d" % (sKr, K_RING, sVr, V_RING))
    A.e("s_mov_b32 s%d, 0" % sSeg)
    seg_setup(A)
    stamp(A, 0)
    load_q(A)
    def unit_now(w):
        g = dma_unit(w)
        for grp in g:
            for ins in grp: A.e(ins)
    for w in ("K", "K", "K", "K", "V", "K", "V"): unit_now(w)
    A.e("s_waitcnt vmcnt(24)\ns_barrier")
    A.e("v_add_u32 v%d, s%d, v%d" % (vNb, sKr, vLane16))
    for j in range(8):
        A.e("ds_read_b128 %s, v%d offset:%d" % (frag(j), vNb, j * 1024))
    A.label(name + "_seg")
    stamp(A, 1)
    A.e("v_mov_b32 v%d, 0xff800000\nv_mov_b32 v%d, 0xff800000\nv_mov_b32 v%d, 0" % (vM, vMc, vL))
    emit_period(A, name, "M1", 1)
    emit_period(A, name, "Z", 0)
    A.e("s_cmp_eq_u32 s%d, 0\ns_cbranch_scc1 %s_tail" % (sLeft, name))
    A.e(".p2align 6")
    A.label(name + "_loop")
    A.e("s_mov_b32 s%d, s%d\ns_mov_b32 s%d, 1" % (sT2 + 40, sLeft, sLeft))
    emit_period(A, name, "ST", 1)
    A.e("s_sub_u32 s%d, s%d, 1" % (sLeft, sT2 + 40))
    emit_period(A, name, "ST", 0)
    A.e("s_cmp_lg_u32 s%d, 0\ns_cbranch_scc1 %s_loop" % (sLeft, name))
    A.label(name + "_tail")
    stamp(A, 2)
    lab = A.newlabel(name + "_noq")
    A.e("s_cmp_eq_u32 s%d, 1\ns_cbranch_scc0 %s" % (sMode, lab))
    A.e("s_mov_b32 s%d, s%d" % (sQt, sP))
    A.e("s_mov_b32 s%d, 0\ns_lshl_b32 s%d, s%d, 2\ns_add_u32 s%d, s%d, 4" % (sSegHb0, sSegN, sP, sSegN, sSegN))
    A.e("s_lshl_b32 s%d, s%d, 6\ns_lshl_b32 s%d, s%d, 2\ns_add_u32 s%d, s%d, s%d\ns_add_u32 s%d, s%d, s%d" % (sT0, sH, sT1, sQt, sT0, sT0, sT1, sT0, sT0, sW))
    A.e("s_lshl_b32 s%d, s%d, 14\ns_add_u32 s%d, s%d, 0x%x" % (sT0, sT0, sQoff, sT0, Q_OFF))
    load_q(A)
    A.label(lab)
    emit_period(A, name, "L1", 1)
    emit_period(A, name, "L2", 0)
    stamp(A, 3)
    A.e("s_nop 15")
    A.e("v_mov_b32 v%d, v%d\ns_nop 1\nv_permlane32_swap_b32 v%d, v%d\ns_nop 1\nv_add_f32 v%d, v%d, v%d" % (vT, vL, vL, vT, vL, vL, vT))
    A.e("s_cmp_eq_u32 s%d, 2\ns_cbranch_scc1 %s_merge" % (sMode, name))
    A.e("v_rcp_f32 v%d, v%d" % (vX, vL))
    A.e("s_cmp_eq_u32 s%d, 1\ns_cbranch_scc1 %s_part" % (sMode, name))
    def ctx_base(qt_reg):
        A.e("s_lshl_b32 s%d, s%d, 3\ns_lshl_b32 s%d, s%d, 1\ns_add_u32 s%d, s%d, s%d\ns_mul_i32 s%d, s%d, %d" % (sT0, qt_reg, sT1, sW, sT0, sT0, sT1, sT0, sT0, ACT_KS))
        A.e("s_lshl_b32 s%d, s%d, 3\ns_add_u32 s%d, s%d, s%d\ns_lshl_b32 s%d, s%d, 10\ns_add_u32 s%d, s%d, 0x%x" % (sT1, sH, sT0, sT0, sT1, sT0, sT0, sT0, sT0, ACT_OFF))
    ctx_base(sQt)
    for i in range(16):
        dt, a = i // 2, i % 2
        dst = vX + 4 + 4 * (i % 8)
        pack_tile(A, dt, a, dst, vX)
        A.e("s_add_u32 s%d, s%d, %d" % (sT1, sT0, dt * 1024))
        A.e("buffer_store_dwordx4 %s, v%d, s[%d:%d], s%d offen offset:%d" % (vr(dst, 4), vStC, sWS, sWS + 3, sT1, a * 512))
    A.e("s_branch %s_fin" % name)
    A.label(name + "_part")
    A.e("s_lshl_b32 s%d, s%d, 16\ns_lshl_b32 s%d, s%d, 14\ns_add_u32 s%d, s%d, s%d\ns_add_u32 s%d, s%d, 0x%x" % (sT0, sPH, sT1, sW, sT0, sT0, sT1, sT0, sT0, PART_OFF))
    for i in range(16):
        dt, a = i // 2, i % 2
        dst = vX + 4 + 4 * (i % 8)
        pack_tile(A, dt, a, dst, vX)
        A.e("s_add_u32 s%d, s%d, %d" % (sT1, sT0, (i // 4) * 4096))
        A.e("buffer_store_dwordx4 %s, v%d, s[%d:%d], s%d offen offset:%d sc1" % (vr(dst, 4), vLane16, sWS, sWS + 3, sT1, (i % 4) * 1024))
    A.e("v_mov_b32 v%d, v%d\nv_mov_b32 v%d, v%d" % (vT, vM, vT + 1, vL))
    A.e("s_lshl_b32 s%d, s%d, 11\ns_lshl_b32 s%d, s%d, 9\ns_add_u32 s%d, s%d, s%d\ns_add_u32 s%d, s%d, 0x%x" % (sT0, sPH, sT1, sW, sT0, sT0, sT1, sT0, sT0, STAT_OFF))
    A.e("v_lshlrev_b32 v%d, 3, v%d" % (vT + 2, vLn))
    A.e("buffer_store_dwordx2 %s, v%d, s[%d:%d], s%d offen sc1" % (vr(vT, 2), vT + 2, sWS, sWS + 3, sT0))
    A.e("s_waitcnt vmcnt(0)\ns_barrier")
    lab = A.newlabel(name + "_noflag")
    A.e("s_cmp_lg_u32 s%d, 0\ns_cbranch_scc1 %s" % (sW, lab))
    A.e("s_lshl_b32 s%d, s%d, 7\ns_add_u32 s%d, s%d, 0x%x" % (sT0, sPH, sT0, sT0, FLAG_OFF))
    A.e("v_mov_b32 v%d, 1\nv_mov_b32 v%d, 0" % (vT, vT + 1))
    A.e("buffer_store_dword v%d, v%d, s[%d:%d], s%d offen sc1" % (vT, vT + 1, sWS, sWS + 3, sT0))
    A.label(lab)
    A.e("s_mov_b32 s%d, 0" % sMode)
    seg_setup(A)
    A.e("s_branch %s_seg" % name)
    A.label(name + "_merge")
    lab = A.newlabel(name + "_nopoll"); lp = A.newlabel(name + "_poll")
    A.e("s_cmp_lg_u32 s%d, 0\ns_cbranch_scc1 %s" % (sW, lab))
    A.e("s_lshl_b32 s%d, s%d, 7\ns_add_u32 s%d, s%d, 0x%x" % (sT0, sPH, sT0, sT0, FLAG_OFF))
    A.e("v_mov_b32 v%d, 0" % (vT + 1))
    A.e("s_mov_b32 s%d, 0x40000" % sT2)
    A.label(lp)
    A.e("s_sub_u32 s%d, s%d, 1\ns_cmp_eq_u32 s%d, 0\ns_cbranch_scc1 %s" % (sT2, sT2, sT2, lab))
    A.e("buffer_load_dword v%d, v%d, s[%d:%d], s%d offen sc1" % (vT, vT + 1, sWS, sWS + 3, sT0))
    A.e("s_waitcnt vmcnt(0)\nv_readfirstlane_b32 s%d, v%d\ns_nop 3\ns_cmp_eq_u32 s%d, 1\ns_cbranch_scc1 %s\ns_sleep 8\ns_branch %s" % (sT1, vT, sT1, lab, lp))
    A.label(lab)
    A.e("s_barrier")
    A.e("s_lshl_b32 s%d, s%d, 11\ns_lshl_b32 s%d, s%d, 9\ns_add_u32 s%d, s%d, s%d\ns_add_u32 s%d, s%d, 0x%x" % (sT0, sPH, sT1, sW, sT0, sT0, sT1, sT0, sT0, STAT_OFF))
    A.e("v_lshlrev_b32 v%d, 3, v%d" % (vT + 2, vLn))
    A.e("buffer_load_dwordx2 %s, v%d, s[%d:%d], s%d offen sc1" % (vr(vT + 4, 2), vT + 2, sWS, sWS + 3, sT0))
    A.e("s_lshl_b32 s%d, s%d, 16\ns_lshl_b32 s%d, s%d, 14\ns_add_u32 s%d, s%d, s%d\ns_add_u32 s%d, s%d, 0x%x" % (sT2, sPH, sT1, sW, sT2, sT2, sT1, sT2, sT2, PART_OFF))
    pregs = [16 + 4 * i for i in range(12)] + [vX + 32 + 4 * i for i in range(4)]
    for i in range(16):
        A.e("s_add_u32 s%d, s%d, %d" % (sT1, sT2, (i // 4) * 4096))
        A.e("buffer_load_dwordx4 %s, v%d, s[%d:%d], s%d offen offset:%d sc1" % (vr(pregs[i], 4), vLane16, sWS, sWS + 3, sT1, (i % 4) * 1024))
    A.e("s_waitcnt vmcnt(16)")
    mB, lB = vT + 4, vT + 5
    mN, eA, eB, fA, fB = vX, vX + 1, vX + 2, vX + 3, 14
    A.e("v_max_f32 v%d, v%d, v%d" % (mN, vM, mB))
    A.e("v_sub_f32 v%d, v%d, v%d\nv_sub_f32 v%d, v%d, v%d" % (eA, vM, mN, eB, mB, mN))
    A.e("v_mul_f32 v%d, s%d, v%d\nv_mul_f32 v%d, s%d, v%d" % (eA, sC, eA, eB, sC, eB))
    A.e("v_exp_f32 v%d, v%d\nv_exp_f32 v%d, v%d\ns_nop 0" % (eA, eA, eB, eB))
    A.e("v_mul_f32 v%d, v%d, v%d" % (eB, eB, lB))
    A.e("v_fma_f32 v%d, v%d, v%d, v%d" % (fA, vL, eA, eB))
    A.e("v_rcp_f32 v%d, v%d\ns_nop 0" % (fA, fA))
    A.e("v_mul_f32 v%d, v%d, v%d\nv_mul_f32 v%d, v%d, v%d" % (fB, eB, fA, fA, eA, fA))
    ctx_base(sQt)
    for i in range(16):
        dt, a = i // 2, i % 2
        o = vO + 16 * dt
        regs = [o + 4 * a + q for q in range(4)] + [o + 4 * (a + 2) + q for q in range(4)]
        A.e("s_waitcnt vmcnt(%d)" % min(63, 15 - i + i))
        pr = pregs[i]
        dst = vX + 4 + 4 * (i % 7)
        for q in range(4):
            A.e("v_lshlrev_b32 v%d, 16, v%d\nv_and_b32 v%d, 0xffff0000, v%d" % (vT + 8 + 2 * q, pr + q, vT + 9 + 2 * q, pr + q))
        for q in range(8):
            A.e("v_mul_f32 v%d, v%d, v%d" % (vT + q, regs[q], fA))
            A.e("v_fmac_f32 v%d, v%d, v%d" % (vT + q, vT + 8 + q, fB))
        for q in range(4):
            A.e("v_cvt_pk_bf16_f32 v%d, v%d, v%d" % (dst + q, vT + 2 * q, vT + 2 * q + 1))
        A.e("s_add_u32 s%d, s%d, %d" % (sT1, sT0, dt * 1024))
        A.e("buffer_store_dwordx4 %s, v%d, s[%d:%d], s%d offen offset:%d" % (vr(dst, 4), vStC, sWS, sWS + 3, sT1, a * 512))
    A.label(name + "_fin")
    stamp(A, 4)
    A.e("s_waitcnt vmcnt(0) lgkmcnt(0)")
    stamp(A, 5)
    if STAMP:
        lab = A.newlabel("nostamp")
        A.e("s_cmp_lg_u32 s2, %d\ns_cbranch_scc1 %s\ns_cmp_lg_u32 s%d, 0\ns_cbranch_scc1 %s" % (STAMP_WG, lab, sW, lab))
        A.e("s_load_dwordx2 s[98:99], s[0:1], %d\ns_waitcnt lgkmcnt(0)" % KA["dbg"])
        srd(A, 92, 98, 99, 256)
        A.e("v_lshlrev_b32 v16, 2, v%d\nbuffer_store_dword v15, v16, s[92:95], 0 offen\ns_waitcnt vmcnt(0)" % vLn)
        A.label(lab)
    A.label(name + "_done")
    A.e("s_endpgm")
    for par in (0, 1):
        emit_mask(A, name, par)
        emit_fallback(A, name, par)
```

```python
from asmlib import *
from layout import *

NST = 23
RING = 8
SLOT = 16384
sWS, sWt, sWo, sWd, sOut, sX, sDbg = 4, 8, 12, 16, 20, 24, 28
sW, sQ, sMt, sNb, sTile = 32, 33, 34, 35, 36
sAoff = 37
sWoff = 38
sKs = 39
sLeft = 40
sT0, sT1, sT2 = 41, 42, 43
sWw = 44
sPre = 45
vLn, vLane16, vDW = 1, 2, 3
vRd = 4
vSt = 11
vAcc = 16
vWf = 72
vAct = 128
STAMP = False
STAMP_WG = 0
def stamp(A, n):
    if not STAMP: return
    A.e("s_waitcnt lgkmcnt(0)\ns_memtime s[98:99]\ns_memrealtime s[100:101]\ns_waitcnt lgkmcnt(0)")
    A.e("v_writelane_b32 v15, s98, %d\nv_writelane_b32 v15, s100, %d" % (2 * n, 2 * n + 1))

def acc(st, nt): return vAcc + 4 * (st * 7 + nt)
def wf(s, nt): return vWf + 28 * s + 4 * nt
def act(slot, ks, st): return 16 * slot + 8 * ks + 4 * st

def prefetch(slot):
    g = []
    for ks in range(2):
        for half in range(2):
            g.append(["s_add_u32 m0, s%d, %d" % (sWw, slot * SLOT + ks * 8192 + half * 4096),
                      "s_add_u32 s%d, s%d, %d" % (sT0, sWoff, (ks * 32 + half * 16) * 896),
                      "buffer_load_dwordx4 v%d, s[%d:%d], s%d offen lds" % (vDW, sWt, sWt + 3, sT0)])
    for ks in range(2):
        for st in range(2):
            g.append(["s_add_u32 s%d, s%d, %d" % (sT1, sAoff, ks * 1024 + st * ACT_KS * 1024),
                      "buffer_load_dwordx4 %s, v%d, s[%d:%d], s%d offen" % (ar(act(slot, ks, st), 4), vLane16, sWS, sWS + 3, sT1)])
    g.append(["s_add_u32 s%d, s%d, 2048" % (sAoff, sAoff), "s_add_u32 s%d, s%d, %d" % (sWoff, sWoff, 64 * 896),
              "s_add_u32 s%d, s%d, 2" % (sKs, sKs)])
    g.append(["s_cmp_eq_u32 s%d, 128" % sKs, "s_cselect_b32 s%d, s%d, s%d" % (sWt, sWd, sWt),
              "s_cselect_b32 s%d, s%d, s%d" % (sWt + 1, sWd + 1, sWt + 1), "s_cselect_b32 s%d, s%d, s%d" % (sWt + 2, sWd + 2, sWt + 2),
              "s_cselect_b32 s%d, s%d, s%d" % (sWoff, sT2, sWoff)])
    g.append(["s_sub_u32 s%d, s%d, 1" % (sPre, sPre), "s_cmp_eq_u32 s%d, 0" % sPre,
              "s_cselect_b32 s%d, 0x7fff0000, s%d" % (sAoff, sAoff), "s_cselect_b32 s%d, 0x7fff0000, s%d" % (sWoff, sWoff)])
    return g

def wreads(setn, slot, ks):
    out = []
    for nt in range(7):
        o = slot * SLOT + ks * 8192
        hi = o >= 65536
        out.append("ds_read_b64_tr_b16 %s, v%d offset:%d" % (vr(wf(setn, nt), 2), vRd + nt + (0), o % 65536) if not hi else
                   "ds_read_b64_tr_b16 %s, v%d offset:%d" % (vr(wf(setn, nt), 2), vRdHi + nt, o - 65536))
        out.append("ds_read_b64_tr_b16 %s, v%d offset:%d" % (vr(wf(setn, nt) + 2, 2), vRd + nt, o + 4096) if not hi else
                   "ds_read_b64_tr_b16 %s, v%d offset:%d" % (vr(wf(setn, nt) + 2, 2), vRdHi + nt, o - 65536 + 4096))
    return out
vRdHi = 128
vRd = 4

def gen_k3(A, name):
    kernel_begin(A, name)
    A.e("s_cmp_ge_u32 s2, 256\ns_cbranch_scc1 %s_done" % name)
    A.e("s_load_dwordx2 s[48:49], s[0:1], %d" % KA["x"])
    A.e("s_load_dwordx2 s[50:51], s[0:1], %d" % KA["wo"])
    A.e("s_load_dwordx2 s[52:53], s[0:1], %d" % KA["wd"])
    A.e("s_load_dwordx4 s[56:59], s[0:1], %d" % KA["out"])
    A.e("s_load_dwordx2 s[54:55], s[0:1], %d" % KA["ws"])
    A.e("v_and_b32 v%d, 63, v0" % vLn)
    if STAMP: A.e("v_mov_b32 v15, 0")
    A.e("v_lshrrev_b32 v14, 6, v0\ns_nop 0\nv_readfirstlane_b32 s%d, v14" % sW)
    A.e("v_lshlrev_b32 v%d, 4, v%d" % (vLane16, vLn))
    A.e("s_and_b32 s60, s2, 7\ns_lshr_b32 s61, s2, 3")
    A.e("s_lshr_b32 s%d, s60, 1" % sQ)
    A.e("s_and_b32 s62, s60, 1\ns_lshl_b32 s62, s62, 3\ns_lshr_b32 s63, s61, 2\ns_add_u32 s%d, s62, s63" % sMt)
    A.e("s_and_b32 s%d, s61, 3" % sNb)
    A.e("s_lshl_b32 s%d, s%d, 2\ns_add_u32 s%d, s%d, s%d" % (sTile, sMt, sTile, sTile, sNb))
    A.e("v_lshrrev_b32 v16, 4, v%d\nv_and_b32 v17, 15, v%d" % (vLn, vLn))
    A.e("s_and_b32 s62, s%d, 1\ns_lshl_b32 s62, s62, 2" % sW)
    A.e("v_add_u32 v18, s62, v16\nv_lshlrev_b32 v18, 1, v18\nv_xor_b32 v18, v17, v18")
    A.e("s_movk_i32 s63, 896\nv_mul_lo_u32 v19, v16, s63\nv_lshl_add_u32 v%d, v18, 4, v19" % vDW)
    A.e("v_cmp_gt_u32 vcc, 14, v18\nv_mov_b32 v19, 0x40000000\ns_nop 0\nv_cndmask_b32 v%d, v19, v%d, vcc" % (vDW, vDW))
    A.e("v_lshrrev_b32 v18, 2, v17\nv_and_b32 v19, 3, v%d" % vLn)
    A.e("v_lshl_add_u32 v20, v16, 2, v18")
    A.e("v_and_b32 v21, 7, v20")
    A.e("v_lshlrev_b32 v20, 8, v20\nv_lshl_add_u32 v20, v19, 3, v20")
    for nt in range(7):
        A.e("v_xor_b32 v22, %d, v21\nv_lshl_add_u32 v%d, v22, 5, v20" % (nt, vRd + nt))
    A.e("s_waitcnt lgkmcnt(0)")
    srd(A, sWS, 54, 55, WS_SIZE)
    srd(A, sWo, 50, 51, H * D * M * 2)
    srd(A, sWd, 52, 53, F * M * 2)
    srd(A, sOut, 56, 57, S * M * 2)
    srd(A, sX, 48, 49, S * M * 2)
    srd(A, sDbg, 58, 59, 256)
    A.e("s_mul_i32 s%d, s%d, 46" % (sKs, sQ))
    A.e("s_cmp_ge_u32 s%d, 128" % sKs)
    A.e("s_cselect_b32 s%d, s%d, s%d\ns_cselect_b32 s%d, s%d, s%d\ns_cselect_b32 s%d, s%d, s%d\ns_mov_b32 s%d, 0x20000" %
        (sWt, sWd, sWo, sWt + 1, sWd + 1, sWo + 1, sWt + 2, sWd + 2, sWo + 2, sWt + 3))
    A.e("s_cselect_b32 s62, 128, 0\ns_sub_u32 s62, s%d, s62\ns_lshl_b32 s62, s62, 5" % sKs)
    A.e("s_lshl_b32 s63, s%d, 2\ns_add_u32 s62, s62, s63\ns_mul_i32 s62, s62, 896" % sW)
    A.e("s_mul_i32 s64, s%d, 224\ns_add_u32 s%d, s62, s64" % (sNb, sWoff))
    A.e("s_mul_i32 s62, s63, 896\ns_add_u32 s%d, s62, s64" % sT2)
    A.e("s_lshl_b32 s%d, s%d, 10" % (sWw, sW))
    A.e("s_lshl_b32 s62, s%d, 3\ns_lshl_b32 s63, s%d, 1\ns_add_u32 s62, s62, s63\ns_mul_i32 s62, s62, %d" % (sMt, sW, ACT_KS))
    A.e("s_add_u32 s62, s62, s%d\ns_lshl_b32 s62, s62, 10\ns_add_u32 s%d, s62, 0x%x" % (sKs, sAoff, ACT_OFF))
    A.e("s_mov_b32 s%d, %d" % (sPre, NST))
    stamp(A, 0)
    for slot in range(RING - 1):
        for grp in prefetch(slot):
            for k, ins in enumerate(grp):
                A.e(ins)
                if "m0" in ins: A.e("s_nop 0")
    for r in range(56): A.e("v_mov_b32 v%d, 0" % (vAcc + r))
    for nt in range(7): A.e("v_add_u32 v%d, 0x10000, v%d" % (vRdHi + nt, vRd + nt))
    A.e("s_waitcnt vmcnt(%d)\ns_barrier" % (8 * (RING - 2)))
    for ins in wreads(0, 0, 0): A.e(ins)
    A.e("s_mov_b32 s%d, %d" % (sLeft, NST))
    stamp(A, 1)
    A.e(".p2align 6")
    A.label(name + "_loop")
    for slot in range(RING):
        for ks in range(2):
            setn = ks
            if ks == 0:
                nxt = wreads(1, slot, 1)
                pf = []
            else:
                nxt = wreads(0, (slot + 1) % RING, 0)
                pf = prefetch((slot + RING - 1) % RING)
                A.e("s_waitcnt vmcnt(%d)\ns_barrier" % (8 * (RING - 3)))
            A.e("s_waitcnt lgkmcnt(0)")
            gaps = [[] for _ in range(14)]
            for k, ins in enumerate(nxt): gaps[k].append(ins)
            flat = []
            for grp in pf: flat += [grp]
            for k, grp in enumerate(flat): gaps[(k * 14) // len(flat)] += grp
            n = 0
            for nt in range(7):
                for st in range(2):
                    A.e("v_mfma_f32_16x16x32_bf16 %s, %s, %s, %s" % (vr(acc(st, nt), 4), vr(wf(setn, nt), 4), ar(act(slot, ks, st), 4), vr(acc(st, nt), 4)))
                    prev_m0 = False
                    for ins in gaps[n]:
                        if prev_m0 and ins.startswith("buffer_load"): A.e("s_nop 0")
                        A.e(ins)
                        prev_m0 = "m0" in ins
                    n += 1
        A.e("s_sub_u32 s%d, s%d, 1\ns_cmp_eq_u32 s%d, 0\ns_cbranch_scc1 %s_epi" % (sLeft, sLeft, sLeft, name))
    A.e("s_branch %s_loop" % name)
    A.label(name + "_epi")
    stamp(A, 2)
    A.e("s_nop 7\ns_nop 1")
    A.e("s_lshl_b32 s62, s%d, 2\ns_add_u32 s62, s62, s%d\ns_lshl_b32 s62, s62, 2\ns_add_u32 s62, s62, s%d\ns_mul_i32 s62, s62, %d\ns_add_u32 s62, s62, 0x%x" % (sTile, sQ, sW, 14 * 1024, OPART_OFF))
    for i in range(14):
        A.e("s_add_u32 s63, s62, %d" % (i * 1024))
        A.e("buffer_store_dwordx4 %s, v%d, s[%d:%d], s63 offen sc1" % (vr(vAcc + 4 * i, 4), vLane16, sWS, sWS + 3))
    A.e("s_waitcnt vmcnt(0)\ns_barrier")
    lab = A.newlabel(name + "_notick")
    A.e("s_cmp_lg_u32 s%d, 0\ns_cbranch_scc1 %s" % (sW, lab))
    A.e("v_mov_b32 v72, 1\nv_mov_b32 v73, 0\ns_lshl_b32 s63, s%d, 2" % sTile)
    A.e("v_cmp_eq_u32 vcc, 0, v%d\ns_and_saveexec_b64 s[64:65], vcc" % vLn)
    A.e("buffer_atomic_add v72, v73, s[%d:%d], s63 offen sc0" % (sDbg, sDbg + 3))
    A.e("s_waitcnt vmcnt(0)")
    A.e("v_mov_b32 v74, 0x20000\nds_write_b32 v74, v72\ns_waitcnt lgkmcnt(0)")
    A.e("s_mov_b64 exec, s[64:65]")
    A.label(lab)
    A.e("s_barrier")
    A.e("v_mov_b32 v74, 0x20000\nds_read_b32 v72, v74\ns_waitcnt lgkmcnt(0)\nv_readfirstlane_b32 s63, v72\ns_nop 3")
    A.e("s_cmp_lg_u32 s63, 3\ns_cbranch_scc1 %s_done" % name)
    stamp(A, 3)
    A.e("s_lshl_b32 s62, s%d, 4\ns_add_u32 s62, s62, s%d\ns_mul_i32 s62, s62, %d\ns_add_u32 s62, s62, 0x%x" % (sTile, sW, 14 * 1024, OPART_OFF))
    A.e("v_and_b32 v72, 15, v%d\nv_lshrrev_b32 v73, 4, v%d\ns_movk_i32 s63, 896\nv_mul_lo_u32 v72, v72, s63\nv_lshl_add_u32 v%d, v73, 3, v72" % (vLn, vLn, vSt))
    A.e("s_lshl_b32 s64, s%d, 7\ns_lshl_b32 s65, s%d, 5\ns_add_u32 s64, s64, s65\ns_mul_i32 s64, s64, 896\ns_mul_i32 s65, s%d, 224\ns_add_u32 s64, s64, s65" % (sMt, sW, sNb))
    for i in range(14):
        st, nt = i // 7, i % 7
        A.e("s_add_u32 s63, s64, %d" % (st * 16 * 896 + nt * 32))
        A.e("buffer_load_dwordx2 %s, v%d, s[%d:%d], s63 offen" % (vr(128 + 2 * i, 2), vSt, sX, sX + 3))
    for dq in range(1, 4):
        A.e("s_add_u32 s63, s%d, %d\ns_and_b32 s63, s63, 3\ns_mul_i32 s63, s63, %d\ns_add_u32 s63, s63, s62" % (sQ, dq, 4 * 14 * 1024))
        base = 160 if dq % 2 else 72
        for i in range(14):
            A.e("s_add_u32 s65, s63, %d" % (i * 1024))
            A.e("buffer_load_dwordx4 %s, v%d, s[%d:%d], s65 offen sc1" % (vr(base + 4 * i, 4), vLane16, sWS, sWS + 3))
        A.e("s_waitcnt vmcnt(0)")
        for r in range(56):
            A.e("v_add_f32 v%d, v%d, v%d" % (vAcc + r, vAcc + r, base + r))
    for i in range(14):
        st, nt = i // 7, i % 7
        xr = 128 + 2 * i
        a = vAcc + 4 * i
        A.e("v_lshlrev_b32 v72, 16, v%d\nv_and_b32 v73, 0xffff0000, v%d\nv_lshlrev_b32 v74, 16, v%d\nv_and_b32 v75, 0xffff0000, v%d" % (xr, xr, xr + 1, xr + 1))
        for q in range(4): A.e("v_add_f32 v%d, v%d, v%d" % (a + q, a + q, 72 + q))
        A.e("v_cvt_pk_bf16_f32 v%d, v%d, v%d\nv_cvt_pk_bf16_f32 v%d, v%d, v%d" % (xr, a, a + 1, xr + 1, a + 2, a + 3))
        A.e("s_add_u32 s63, s64, %d" % (st * 16 * 896 + nt * 32))
        A.e("buffer_store_dwordx2 %s, v%d, s[%d:%d], s63 offen" % (vr(xr, 2), vSt, sOut, sOut + 3))
    stamp(A, 4)
    A.e("s_waitcnt vmcnt(0)")
    if STAMP:
        lab = A.newlabel("nostamp")
        A.e("s_cmp_lg_u32 s%d, %d\ns_cbranch_scc1 %s\ns_cmp_lg_u32 s%d, 0\ns_cbranch_scc1 %s" % (sTile, STAMP_WG % 64, lab, sW, lab))
        A.e("s_load_dwordx2 s[98:99], s[0:1], %d\ns_waitcnt lgkmcnt(0)" % KA["ws"])
        A.e("s_add_u32 s98, s98, 0x%x\ns_addc_u32 s99, s99, 0" % (FLAG_OFF + 0x10000))
        srd(A, 92, 98, 99, 256)
        A.e("v_lshlrev_b32 v16, 2, v%d\nbuffer_store_dword v15, v16, s[92:95], 0 offen\ns_waitcnt vmcnt(0)" % vLn)
        A.label(lab)
    A.label(name + "_done")
    A.e("s_endpgm")
```

```python
S = 2048; M = 448; H = 16; D = 256; DC = 1024; F = 1792
XN_OFF   = 0x0000000
Q_OFF    = 0x0200000
K_OFF    = 0x1200000
V_OFF    = 0x2200000
ACT_OFF  = 0x3200000
ACT_KS   = 184
ACT_SIZE = 128 * ACT_KS * 1024
PART_OFF = 0x4A00000
STAT_OFF = 0x5A00000
FLAG_OFF = 0x5B00000
OPART_OFF = 0x5C00000
WS_SIZE  = 268435456
KA = dict(x=0, ckv=8, wq=16, wuk=24, wuv=32, wo=40, bx=48, wg=56, wu=64, wd=72, out=80, dbg=88, ws=96)
```

```python
import sys
sys.path.insert(0, "dev")
from asmlib import *
from layout import *
import gen_k01, gen_k2, gen_k3

HEADER = open("parallel_sum__compressed_kv_cla__glu_gated_bilinear__prompt.s.ref").read().split("; Override launch")[0]

def build(kernels):
    A = Asm()
    A.e(HEADER.rstrip())
    for k in kernels:
        A.e("; @launch kernel=%s grid=(%d,1,1) block=(%d,1,1) lds=%d" % (k["name"], k["grid"], k["block"], k["lds"]))
    A.e('.amdgcn_target "amdgcn-amd-amdhsa--gfx950"')
    for k in kernels:
        k["gen"](A, k["name"])
    for k in kernels:
        kernel_desc(A, k["name"], k["vgprs"], k["accum"], k.get("sgprs", 102))
    return A.text()

KERNELS = {
    "k0": dict(name="ln_kernel", grid=256, block=256, lds=0, gen=gen_k01.gen_k0, vgprs=64, accum=64),
    "k1": dict(name="proj_kernel", grid=256, block=256, lds=163840, gen=gen_k01.gen_k1, vgprs=512, accum=256),
}


KERNELS["k2"] = dict(name="attn_kernel", grid=256, block=256, lds=163840, gen=gen_k2.gen_k2, vgprs=384, accum=256)
KERNELS["k3"] = dict(name="out_kernel", grid=256, block=256, lds=135168, gen=gen_k3.gen_k3, vgprs=384, accum=256)
def gen_empty(A, name):
    kernel_begin(A, name)
    A.e("s_endpgm")
KERNELS["e0"] = dict(name="e0_kernel", grid=256, block=256, lds=0, gen=gen_empty, vgprs=64, accum=64)
KERNELS["e1"] = dict(name="e1_kernel", grid=256, block=256, lds=163840, gen=gen_empty, vgprs=512, accum=256)

if __name__ == "__main__":
    out = sys.argv[1]
    names = sys.argv[2].split(",")
    for opt in sys.argv[3:]:
        if opt.startswith("stamp"):
            gen_k01.STAMP = True
            gen_k01.STAMP_WG = int(opt[5:] or 0)
            gen_k2.STAMP = True
            gen_k3.STAMP = True
            gen_k3.STAMP_WG = int(opt[5:] or 0)
            gen_k2.STAMP_WG = int(opt[5:] or 0)
        elif opt.startswith("st="):
            gen_k01.STORE_FLAGS = opt[3:].replace("+", " ")
        elif opt.startswith("exp="):
            gen_k2.EXP = set(opt[4:].split("+"))
        elif opt == "nostore":
            gen_k01.NO_STORE = True
    open(out, "w").write(build([KERNELS[n] for n in names]))
```

```python
class Asm:
    def __init__(self):
        self.lines = []
        self._lab = 0
    def e(self, s):
        for ln in s.split("\n"):
            self.lines.append(ln)
    def label(self, name):
        self.lines.append(name + ":")
    def newlabel(self, stem):
        self._lab += 1
        return "%s_%d" % (stem, self._lab)
    def text(self):
        return "\n".join(self.lines) + "\n"

def vr(base, n=1):
    return "v%d" % base if n == 1 else "v[%d:%d]" % (base, base + n - 1)
def ar(base, n=1):
    return "a%d" % base if n == 1 else "a[%d:%d]" % (base, base + n - 1)
def sr(base, n=1):
    return "s%d" % base if n == 1 else "s[%d:%d]" % (base, base + n - 1)

def kernel_begin(A, name):
    A.e(".text\n.globl %s\n.p2align 8\n.type %s,@function" % (name, name))
    A.label(name)

def kernel_desc(A, name, vgprs, accum, sgprs=102):
    A.e('.section .rodata,"a"\n.p2align 6\n.amdhsa_kernel %s' % name)
    A.e("  .amdhsa_next_free_vgpr %d\n  .amdhsa_next_free_sgpr %d\n  .amdhsa_accum_offset %d" % (vgprs, sgprs, accum))
    A.e("  .amdhsa_group_segment_fixed_size 0\n  .amdhsa_kernarg_size 104\n  .amdhsa_user_sgpr_count 2")
    A.e("  .amdhsa_user_sgpr_kernarg_segment_ptr 1\n  .amdhsa_system_sgpr_workgroup_id_x 1")
    A.e("  .amdhsa_float_denorm_mode_32 3\n  .amdhsa_float_denorm_mode_16_64 3")
    A.e(".end_amdhsa_kernel")

def srd(A, s, ptr_lo, ptr_hi, nbytes):
    A.e("s_mov_b32 s%d, s%d" % (s, ptr_lo))
    A.e("s_and_b32 s%d, s%d, 0xffff" % (s + 1, ptr_hi))
    A.e("s_mov_b32 s%d, 0x%x" % (s + 2, nbytes))
    A.e("s_mov_b32 s%d, 0x20000" % (s + 3))

def stamp_store(A, kidx, wg, sW, vLn, ts_off, ws_ka):
    lab = A.newlabel("nostamp")
    A.e("s_cmp_lg_u32 s2, %d\ns_cbranch_scc1 %s\ns_cmp_lg_u32 s%d, 0\ns_cbranch_scc1 %s" % (wg, lab, sW, lab))
    A.e("s_load_dwordx2 s[98:99], s[0:1], %d\ns_waitcnt lgkmcnt(0)" % ws_ka)
    A.e("s_add_u32 s98, s98, 0x%x\ns_addc_u32 s99, s99, 0" % (ts_off + kidx * 256))
    srd(A, 92, 98, 99, 256)
    A.e("v_lshlrev_b32 v16, 2, v%d\nbuffer_store_dword v15, v16, s[92:95], 0 offen\ns_waitcnt vmcnt(0)" % vLn)
    A.label(lab)
```

```python
S = 2048; M = 448; H = 16; D = 256; DC = 1024; F = 1792
XN_OFF   = 0x0000000
Q_OFF    = 0x0200000
K_OFF    = 0x1200000
V_OFF    = 0x2200000
ACT_OFF  = 0x3200000
ACT_KS   = 184
ACT_SIZE = 128 * ACT_KS * 1024
PART_OFF = 0x4A00000
STAT_OFF = 0x5A00000
FLAG_OFF = 0x5B00000
TS_OFF = FLAG_OFF + 0x10000
OPART_OFF = 0x5C00000
WF_OFF   = 0x6C00000
WS_SIZE  = 268435456
FL_KVC, FL_GUC, FL_QF, FL_PARTF, FL_CTXC, FL_OUTC, FL_WFC = 0, 16, 32, 160, 288, 352, 416
QSCALE = 0x3db8aa3b
KA = dict(x=0, ckv=8, wq=16, wuk=24, wuv=32, wo=40, bx=48, wg=56, wu=64, wd=72, out=80, dbg=88, ws=96)
```

```python
from asmlib import *
from layout import *

class G:
    MEGA = False
    STAMP = False
    STAMP_WG = 0
    EXP = set()

sW = 3
sWS = 4
P = dict(x=72, ckv=74, wq=76, wuk=78, wuv=80, wo=82, bx=84, wg=86, wu=88, wd=90, out=92, dbg=94, ws=96)
vLn = 1
vStamp = 15

class Em:
    def __init__(self, A):
        self.A = A
        self.last_m0 = False
    def e(self, s):
        for ln in s.split("\n"):
            if self.last_m0 and ln.startswith("buffer_load") and ln.rstrip().endswith("lds"):
                self.A.e("s_nop 0")
            self.A.e(ln)
            self.last_m0 = (" m0," in ln) and ln.startswith("s_")
    def label(self, n):
        self.A.label(n); self.last_m0 = False
    def newlabel(self, s): return self.A.newlabel(s)

def stamp(A, n):
    if not G.STAMP: return
    A.e("s_waitcnt lgkmcnt(0)\ns_memtime s[98:99]\ns_memrealtime s[100:101]\ns_waitcnt lgkmcnt(0)")
    A.e("v_writelane_b32 v%d, s98, %d\nv_writelane_b32 v%d, s100, %d" % (vStamp, 2 * n, vStamp, 2 * n + 1))

def stamp_flush(A, kidx):
    if not G.STAMP: return
    lab = A.newlabel("nostamp")
    A.e("s_cmp_lg_u32 s%d, 0\ns_cbranch_scc1 %s" % (sW, lab))
    A.e("s_lshl_b32 s98, s2, 8\ns_add_u32 s98, s98, 0x%x" % (TS_OFF + kidx * 65536))
    A.e("v_mbcnt_lo_u32_b32 v16, -1, 0\nv_mbcnt_hi_u32_b32 v16, -1, v16\nv_lshlrev_b32 v16, 2, v16")
    A.e("buffer_store_dword v%d, v16, s[%d:%d], s98 offen\ns_waitcnt vmcnt(0)" % (vStamp, sWS, sWS + 3))
    A.label(lab)

def common_setup(A, name):
    A.e("s_cmp_ge_u32 s2, 256\ns_cbranch_scc1 %s_done" % name)
    A.e("s_load_dwordx16 s[72:87], s[0:1], 0")
    A.e("s_load_dwordx8 s[88:95], s[0:1], 64")
    A.e("s_load_dwordx2 s[96:97], s[0:1], 96")
    A.e("v_and_b32 v%d, 63, v0" % vLn)
    if G.STAMP: A.e("v_mov_b32 v%d, 0" % vStamp)
    A.e("v_lshrrev_b32 v2, 6, v0\ns_nop 0\nv_readfirstlane_b32 s%d, v2" % sW)
    A.e("s_waitcnt lgkmcnt(0)")
    srd(A, sWS, P["ws"], P["ws"] + 1, WS_SIZE)

def code_prefetch(A, name, nbytes):
    if "nocode" in G.EXP: return
    lab = A.newlabel(name + "_nocp")
    A.e("s_cmp_lg_u32 s%d, 3\ns_cbranch_scc1 %s" % (sW, lab))
    A.e("s_getpc_b64 s[98:99]")
    A.e("s_lshr_b32 s100, s2, 3\ns_lshl_b32 s100, s100, 13")
    A.e("v_lshlrev_b32 v2, 7, v%d\nv_add_u32 v2, s100, v2\nv_min_u32 v2, %d, v2" % (vLn, nbytes - 256))
    A.e("global_load_dword a255, v2, s[98:99]")
    A.label(lab)

def spread(gaps, items, lo, hi):
    n = len(items)
    if n == 0: return
    for k, it in enumerate(items):
        gaps[lo + (k * (hi - lo)) // n] += it

def flag_add(A, line_sreg_or_const, tmpv, tmps, lab_stem, val=1):
    lab = A.newlabel(lab_stem)
    A.e("s_cmp_lg_u32 s%d, 0\ns_cbranch_scc1 %s" % (sW, lab))
    if isinstance(line_sreg_or_const, int):
        A.e("s_mov_b32 s%d, 0x%x" % (tmps, FLAG_OFF + 128 * line_sreg_or_const))
    else:
        A.e("s_lshl_b32 s%d, %s, 7\ns_add_u32 s%d, s%d, 0x%x" % (tmps, line_sreg_or_const, tmps, tmps, FLAG_OFF))
    A.e("v_mov_b32 v%d, %d\nv_mov_b32 v%d, 0" % (tmpv, val, tmpv + 1))
    A.e("s_mov_b64 s[%d:%d], exec\ns_mov_b64 exec, 1" % (tmps + 2, tmps + 3))
    A.e("buffer_atomic_add v%d, v%d, s[%d:%d], s%d offen" % (tmpv, tmpv + 1, sWS, sWS + 3, tmps))
    A.e("s_mov_b64 exec, s[%d:%d]" % (tmps + 2, tmps + 3))
    A.label(lab)

def flag_wait(A, line_sreg_or_const, target, tmpv, tmps, lab_stem):
    if not G.MEGA: return
    lab = A.newlabel(lab_stem); lp = A.newlabel(lab_stem + "_poll")
    A.e("s_cmp_lg_u32 s%d, 0\ns_cbranch_scc1 %s" % (sW, lab))
    if isinstance(line_sreg_or_const, int):
        A.e("s_mov_b32 s%d, 0x%x" % (tmps, FLAG_OFF + 128 * line_sreg_or_const))
    else:
        A.e("s_lshl_b32 s%d, %s, 7\ns_add_u32 s%d, s%d, 0x%x" % (tmps, line_sreg_or_const, tmps, tmps, FLAG_OFF))
    A.e("v_mov_b32 v%d, 0\ns_mov_b32 s%d, 0x80000" % (tmpv + 1, tmps + 1))
    A.label(lp)
    A.e("buffer_load_dword v%d, v%d, s[%d:%d], s%d offen sc1" % (tmpv, tmpv + 1, sWS, sWS + 3, tmps))
    A.e("s_waitcnt vmcnt(0)\nv_readfirstlane_b32 s%d, v%d\ns_sub_u32 s%d, s%d, 1" % (tmps + 2, tmpv, tmps + 1, tmps + 1))
    A.e("s_cmp_eq_u32 s%d, 0\ns_cbranch_scc1 %s" % (tmps + 1, lab))
    A.e("s_cmp_ge_u32 s%d, %s\ns_cbranch_scc1 %s\ns_sleep 2\ns_branch %s" % (tmps + 2, target, lab, lp))
    A.label(lab)
```

```python
from mega_common import *

SLOT = 32768
NSLOT = 5
HSPLIT = 40
sH, sP, sRole = 8, 9, 10
sKoff, sVoff, sKend, sVend, sKst, sVst = 12, 13, 14, 15, 16, 17
sX = [18, 19]
sXEnd = 20
sLeft, sQt, sHb, sMaskFrom = 21, 22, 23, 24
sRet = 26
sT0, sT1, sT2, sT3 = 28, 29, 30, 31
sMode, sW4k, sSegN, sSegHb0, sQoff, sPH = 32, 33, 34, 35, 36, 37
sMsk = 50
vLaneAdj = 2
vAd = [3, 4]
vM, vSum, vSum2, vBase, vThr, vStC, vLane16, vAdT = 5, 7, 8, 9, 10, 11, 12, 13
vLp = [6, 14]
vL = 14
STUBS = []
vS = [16, 32]
vP = [48, 56]
vCt = 64
vT = 80
vX = 96
vO = 128
aQ = 0
aF = 64
NF = 8

def frag(i): return ar(aF + 4 * (i % NF), 4)
def koff(i): return i * 512
def voff(i): return (i % 8) * 1024 + (i // 8) * 512
vPat = 0

def wrap_add(dst, src):
    return ["s_add_u32 s%d, s%d, %d" % (dst, src, SLOT), "s_cmp_ge_u32 s%d, s%d" % (dst, sXEnd),
            "s_cselect_b32 s%d, %d, 0" % (sT3, NSLOT * SLOT), "s_sub_u32 s%d, s%d, s%d" % (dst, dst, sT3)]

def dma_pair(slot_reg):
    out = ["s_mov_b32 m0, s%d" % slot_reg]
    for i in range(4):
        out.append("buffer_load_dwordx4 v%d, s[%d:%d], s%d offen offset:%d lds" % (vLane16, sWS, sWS + 3, sKoff, i * 1024))
    out += ["s_add_u32 m0, s%d, 16384" % slot_reg, "s_add_u32 s%d, s%d, 16384" % (sKoff, sKoff)]
    for i in range(4):
        out.append("buffer_load_dwordx4 v%d, s[%d:%d], s%d offen offset:%d lds" % (vLane16, sWS, sWS + 3, sVoff, i * 1024))
    out += ["s_cmp_eq_u32 s%d, s%d" % (sKoff, sKend), "s_cselect_b32 s%d, s%d, s%d" % (sKoff, sKst, sKoff),
            "s_add_u32 s%d, s%d, 16384" % (sVoff, sVoff), "s_cmp_eq_u32 s%d, s%d" % (sVoff, sVend),
            "s_cselect_b32 s%d, s%d, s%d" % (sVoff, sVst, sVoff)]
    return out

def dma_one(which, ldsoff_expr):
    off, end, st = (sKoff, sKend, sKst) if which == "K" else (sVoff, sVend, sVst)
    out = [ldsoff_expr]
    for i in range(4):
        out.append("buffer_load_dwordx4 v%d, s[%d:%d], s%d offen offset:%d lds" % (vLane16, sWS, sWS + 3, off, i * 1024))
    out += ["s_add_u32 s%d, s%d, 16384" % (off, off), "s_cmp_eq_u32 s%d, s%d" % (off, end), "s_cselect_b32 s%d, s%d, s%d" % (off, st, off)]
    return out

def sm_core(par):
    S, Pp = vS[par], vP[par]
    res = []
    for e in range(16 + 2):
        if e < 16:
            res.append("v_exp_f32 v%d, v%d" % (vT + e % 8, S + e))
        k = e - 2
        if 0 <= k < 16:
            t = vT + k % 8
            acc = vSum if k % 2 == 0 else vSum2
            if k >= 2: res.append("v_add_f32 v%d, v%d, v%d" % (acc, acc if k >= 4 else vT + (k - 2) % 8, t))
            if k % 2 == 1:
                pr = k // 2
                R = pr // 2
                preg = Pp + 4 * (R % 2) + 2 * (R // 2) + pr % 2
                res.append("v_cvt_pk_bf16_f32 v%d, v%d, v%d" % (preg, vT + (k - 1) % 8, t))
    res.append("v_add_f32 v%d, v%d, v%d" % (vSum, vSum, vSum2))
    return res

def rowmax(S, t):
    out = ["v_max3_f32 v%d, v%d, v%d, v%d" % (t, S, S + 1, S + 2)]
    for e in range(3, 15, 2):
        out.append("v_max3_f32 v%d, v%d, v%d, v%d" % (t, t, S + e, S + e + 1))
    out += ["v_max_f32 v%d, v%d, v%d" % (t, t, S + 15), "v_mov_b32 v%d, v%d" % (t + 1, t), "s_nop 1",
            "v_permlane32_swap_b32 v%d, v%d" % (t, t + 1), "s_nop 1", "v_max_f32 v%d, v%d, v%d" % (t, t, t + 1)]
    return out

def emit_period(A, name, kind, par, loop_back=None):
    has_qk = kind in ("M1", "Z", "ST")
    has_pv = kind in ("ST", "L1", "L2")
    has_sm = kind in ("ST", "L1")
    has_dma = kind in ("Z", "ST", "L1")
    mf = []
    if has_qk: mf += [("qk", i) for i in range(16)]
    if has_pv: mf += [("pv", i) for i in range(16)]
    n = len(mf)
    bar = n - 8
    cur, nxt = vAd[par ^ 1], vAd[par]
    gaps = [[] for _ in range(n)]
    if kind in ("ST", "L1", "Z"):
        stub = A.newlabel(name + "_mstub"); back = A.newlabel(name + "_mback")
        gaps[0] += ["s_cmp_lt_u32 s%d, s%d" % (sHb, sMaskFrom), "s_cbranch_scc0 %s" % stub, back + ":"]
        STUBS.append((stub, back, "%s_mask%d" % (name, par)))
    if kind == "ST" and par == 1 and G.MEGA:
        stub = A.newlabel(name + "_hstub"); back = A.newlabel(name + "_hback")
        gaps[0] += ["s_cmp_eq_u32 s%d, s39" % sHb, "s_cbranch_scc1 %s" % stub, back + ":"]
        STUBS.append((stub, back, "%s_hiwait" % name))
    sc = []
    if kind == "L1":
        for ins in wrap_add(sT2, sX[par ^ 1]): A.e(ins)
        A.e("v_add_u32 v%d, s%d, v%d" % (vAdT, sT2, vLaneAdj))
        for j in range(8): A.e("ds_read_b128 %s, v%d offset:%d" % (frag(j), vAdT, 16384 + voff(j)))
        sc += dma_pair(sX[par])
        sc += ["s_mov_b32 s%d, s%d" % (sX[par], sT2)] + wrap_add(sT2, sT2) + ["v_add_u32 v%d, s%d, v%d" % (nxt, sT2, vLaneAdj)]
        vV, vN, noff = vAdT, nxt, 16384
    elif kind == "L2":
        vV, vN, noff = vAd[par ^ 1], vAd[par], 0
    else:
        if has_dma:
            dd = dma_pair(sX[par])
            i_last = max(i for i, x in enumerate(dd) if ("s%d" % sX[par]) in x.replace(",", " ").split())
            dd = dd[:i_last + 1] + wrap_add(sX[par], sX[par ^ 1]) + ["v_add_u32 v%d, s%d, v%d" % (nxt, sX[par], vLaneAdj)] + dd[i_last + 1:]
            sc += dd
        else:
            sc += wrap_add(sX[par], sX[par ^ 1]) + ["v_add_u32 v%d, s%d, v%d" % (nxt, sX[par], vLaneAdj)]
        vV, vN, noff = nxt, nxt, 0
    tail_sc = []
    if kind in ("Z", "ST", "L1"): tail_sc.append("s_add_u32 s%d, s%d, 1" % (sHb, sHb))
    if loop_back: tail_sc += ["s_sub_u32 s%d, s%d, 1" % (sLeft, sLeft), "s_cmp_lg_u32 s%d, 0" % sLeft]
    if kind == "ST":
        k_addr = max(i for i, x in enumerate(sc) if x.startswith("v_add_u32"))
        spread(gaps, [[x] for x in sc[:k_addr + 1]], 1, 8)
        spread(gaps, [[x] for x in sc[k_addr + 1:]], 8, bar)
        spread(gaps, [[x] for x in tail_sc], bar + 2, n - 1)
    else:
        spread(gaps, [[x] for x in sc], 1, max(2, bar - 1))
        spread(gaps, [[x] for x in tail_sc], bar + 1, n - 1)
    if has_sm:
        sm = sm_core(par) + ["v_cmp_nle_f32 vcc, v%d, v%d" % (vSum, vThr), "v_add_f32 v%d, v%d, v%d" % (vLp[par], vLp[par ^ 1], vSum)]
        spread(gaps, [[x] for x in sm], 1, n - 1)
    post = []
    if kind == "Z":
        S0, S1 = vS[0], vS[1]
        dl = vT + 8
        z = ["s_nop 3"] + rowmax(S0, dl)
        z += ["v_sub_f32 v%d, v%d, v%d" % (S0 + e, S0 + e, dl) for e in range(16)]
        z += sm_core(0)
        z += ["v_sub_f32 v%d, 0, v%d" % (vCt + e, dl) for e in range(16)]
        z += ["v_mov_b32 v%d, v%d" % (vM, dl), "v_mov_b32 v%d, v%d" % (vLp[0], vSum)]
        spread(gaps, [[x] for x in z], 1, n)
        post = ["s_nop 11"] + ["v_sub_f32 v%d, v%d, v%d" % (S1 + e, S1 + e, dl) for e in range(16)]
    for i, (k, idx) in enumerate(mf):
        if i == bar:
            A.e("s_waitcnt vmcnt(16) lgkmcnt(0)" if (n == 16 and has_qk) else "s_waitcnt vmcnt(16)")
            if not ("nobar" in G.EXP and kind == "ST"): A.e("s_barrier")
        if i % 4 == 0: A.e("s_waitcnt lgkmcnt(4)")
        if k == "qk":
            dd = vr(vS[par ^ 1], 16)
            if idx == 0: c = "0" if kind in ("M1", "Z") else vr(vCt, 16)
            else: c = dd
            A.e("v_mfma_f32_32x32x16_bf16 %s, %s, %s, %s" % (dd, frag(i), ar(aQ + 4 * idx, 4), c))
        else:
            a, dt = idx // 8, idx % 8
            dd = vr(vO + 16 * dt, 16)
            A.e("v_mfma_f32_32x32x16_bf16 %s, %s, %s, %s" % (dd, frag(i), vr(vP[par ^ 1] + 4 * a, 4), dd))
        j = i + 8
        if "nods" in G.EXP and kind == "ST": pass
        elif j < n:
            kk, jidx = mf[j]
            if kk == "qk": A.e("ds_read_b128 %s, v%d offset:%d" % (frag(j), cur, koff(jidx)))
            else: A.e("ds_read_b128 %s, v%d offset:%d" % (frag(j), vV, 16384 + voff(jidx)))
        else:
            A.e("ds_read_b128 %s, v%d offset:%d" % (frag(j), vN, (16384 + voff(j - n)) if noff else koff(j - n)))
        for ins in gaps[i]:
            if kind == "ST":
                if "nodma" in G.EXP and ins.startswith("buffer_load"): continue
                if "novalu" in G.EXP and ins.startswith("v_") and not ins.startswith("v_add_u32"): continue
                if "noexp" in G.EXP and ins.startswith("v_exp"): continue
            if ins.endswith(":"): A.label(ins[:-1])
            else: A.e(ins)
    for ins in post: A.e(ins)
    if has_sm:
        stub = A.newlabel(name + "_fstub"); back = A.newlabel(name + "_fback")
        if not (G.EXP & {"novalu", "noexp", "nodma", "nods", "nobar", "nofb"}):
            A.e("s_cbranch_vccnz %s" % stub)
        A.label(back)
        STUBS.append((stub, back, "%s_fb%d" % (name, par)))
    if loop_back: A.e("s_cbranch_scc1 %s" % loop_back)

def emit_mask(A, name, par):
    A.label("%s_mask%d" % (name, par))
    S = vS[par]
    A.e("s_add_u32 s%d, s%d, s%d\ns_sub_u32 s%d, s%d, s%d\ns_lshl_b32 s%d, s%d, 5" % (sT0, sMaskFrom, sW, sT0, sT0, sHb, sT0, sT0))
    A.e("s_nop 7")
    A.e("v_sub_u32 v%d, s%d, v%d" % (vT, sT0, vBase))
    A.e("v_mov_b32 v%d, 0xf1800000" % (vT + 1))
    for r0 in range(0, 16, 4):
        for r in range(r0, r0 + 4):
            c = 8 * (r // 4) + r % 4
            A.e("v_cmp_gt_i32 s[%d:%d], %d, v%d" % (sMsk + 2 * (r - r0), sMsk + 2 * (r - r0) + 1, c, vT))
        for r in range(r0, r0 + 4):
            A.e("v_cndmask_b32 v%d, v%d, v%d, s[%d:%d]" % (S + r, S + r, vT + 1, sMsk + 2 * (r - r0), sMsk + 2 * (r - r0) + 1))
    A.e("s_setpc_b64 s[%d:%d]" % (sRet, sRet + 1))

def emit_fallback(A, name, par):
    A.label("%s_fb%d" % (name, par))
    S, Sn = vS[par], vS[par ^ 1]
    d = vT + 8
    A.e("s_nop 15")
    for ins in rowmax(S, d): A.e(ins)
    A.e("v_max_f32 v%d, 0, v%d" % (d, d))
    A.e("v_sub_f32 v%d, 0, v%d\nv_exp_f32 v%d, v%d" % (d + 1, d, d + 1, d + 1))
    for e in range(16):
        A.e("v_sub_f32 v%d, v%d, v%d" % (S + e, S + e, d))
        A.e("v_sub_f32 v%d, v%d, v%d" % (Sn + e, Sn + e, d))
        A.e("v_sub_f32 v%d, v%d, v%d" % (vCt + e, vCt + e, d))
    A.e("v_add_f32 v%d, v%d, v%d" % (vM, vM, d))
    for r in range(128):
        A.e("v_mul_f32 v%d, v%d, v%d" % (vO + r, vO + r, d + 1))
    for ins in sm_core(par): A.e(ins)
    A.e("v_fma_f32 v%d, v%d, v%d, v%d" % (vLp[par], vLp[par ^ 1], d + 1, vSum))
    A.e("s_setpc_b64 s[%d:%d]" % (sRet, sRet + 1))

def load_q(A):
    for i in range(16):
        if i % 8 == 0: A.e("s_add_u32 s%d, s%d, %d" % (sT0, sQoff, i * 512))
        A.e("buffer_load_dwordx4 %s, v%d, s[%d:%d], s%d offen offset:%d" % (ar(aQ + 4 * i, 4), vPat, sWS, sWS + 3, sT0, (i % 8) * 512))

def pack_tile(A, dt, a, dst, scale):
    o = vO + 16 * dt
    regs = [o + 4 * a, o + 4 * a + 2, o + 4 * (a + 2), o + 4 * (a + 2) + 2]
    for q, r in enumerate(regs):
        A.e("v_pk_mul_f32 %s, %s, %s op_sel_hi:[1,0]" % (vr(vT + 2 * q, 2), vr(r, 2), vr(scale, 2)))
    for q in range(4):
        A.e("v_cvt_pk_bf16_f32 v%d, v%d, v%d" % (dst + q, vT + 2 * q, vT + 2 * q + 1))

def q_offset(A, qt):
    A.e("s_lshl_b32 s%d, s%d, 6\ns_lshl_b32 s%d, s%d, 2\ns_add_u32 s%d, s%d, s%d\ns_add_u32 s%d, s%d, s%d" % (sT0, sH, sT1, qt, sT0, sT0, sT1, sT0, sT0, sW))
    A.e("s_lshl_b32 s%d, s%d, 14\ns_add_u32 s%d, s%d, 0x%x" % (sT0, sT0, sQoff, sT0, Q_OFF))

def seg_setup(A):
    A.e("s_lshl_b32 s%d, s%d, 2" % (sMaskFrom, sQt))
    A.e("s_mov_b32 s%d, s%d" % (sHb, sSegHb0))
    A.e("s_sub_u32 s%d, s%d, 2\ns_lshr_b32 s%d, s%d, 1" % (sLeft, sSegN, sLeft, sLeft))

def zero_o(A):
    for r in range(128): A.e("v_mov_b32 v%d, 0" % (vO + r))

def d_setup_scalar(A):
    A.e("s_and_b32 s%d, s2, 7\ns_lshr_b32 s%d, s2, 3" % (sT0, sT1))
    A.e("s_lshr_b32 s%d, s%d, 4\ns_lshl_b32 s%d, s%d, 1\ns_add_u32 s%d, s%d, s%d" % (sT2, sT1, sH, sT0, sH, sH, sT2))
    A.e("s_bfe_u32 s%d, s%d, 0x30001\ns_and_b32 s%d, s%d, 1" % (sP, sT1, sRole, sT1))
    A.e("s_lshl_b32 s%d, s%d, 3\ns_add_u32 s%d, s%d, s%d" % (sPH, sH, sPH, sPH, sP))
    A.e("s_lshl_b32 s%d, s%d, 12" % (sW4k, sW))
    A.e("s_sub_u32 s%d, 15, s%d" % (sQt, sP))
    A.e("s_lshl_b32 s%d, s%d, 2\ns_add_u32 s%d, s%d, 4" % (sT1, sQt, sT1, sT1))
    A.e("s_min_u32 s%d, s%d, %d\ns_sub_u32 s%d, s%d, s%d" % (sT2, sT1, HSPLIT, sT3, sT1, sT2))
    A.e("s_lshl_b32 s58, s%d, 2\ns_add_u32 s58, s58, 4" % sP)
    A.e("s_cmp_eq_u32 s%d, 0" % sT3)
    A.e("s_cselect_b32 s%d, 0, 2\ns_cselect_b32 s38, 0, 1\ns_cselect_b32 s39, 0, %d\ns_cselect_b32 s58, s58, s%d\ns_cselect_b32 s59, s%d, s%d" % (sMode, HSPLIT, sT3, sP, sQt))
    A.e("s_cmp_eq_u32 s%d, 0" % sRole)
    A.e("s_cselect_b32 s%d, s%d, s38\ns_cselect_b32 s%d, 0, s39\ns_cselect_b32 s%d, s%d, s58\ns_cselect_b32 s%d, s%d, s59" % (sMode, sMode, sSegHb0, sSegN, sT2, sQt, sQt))
    A.e("s_lshl_b32 s%d, s%d, 20\ns_add_u32 s%d, s%d, s%d" % (sT0, sH, sT0, sT0, sW4k))
    A.e("s_add_u32 s%d, s%d, 0x%x\ns_add_u32 s%d, s%d, 0x%x" % (sKst, sT0, K_OFF, sVst, sT0, V_OFF))
    A.e("s_lshl_b32 s%d, s%d, 14\ns_add_u32 s%d, s%d, s%d\ns_add_u32 s%d, s%d, s%d" % (sT2, sSegHb0, sKoff, sKst, sT2, sVoff, sVst, sT2))
    A.e("s_lshl_b32 s%d, s%d, 14\ns_add_u32 s%d, s%d, s%d\ns_add_u32 s%d, s%d, s%d" % (sT2, sT1, sKend, sKst, sT2, sVend, sVst, sT2))
    A.e("s_cmp_eq_u32 s%d, 1\ns_cselect_b32 s%d, s%d, -1\ns_cselect_b32 s%d, s%d, -1" % (sMode, sKend, sKend, sVend, sVend))
    A.e("s_add_u32 s%d, s%d, %d" % (sXEnd, sW4k, NSLOT * SLOT))
    A.e("s_cmp_eq_u32 s%d, 0\ns_cselect_b32 s39, 27, -1" % sRole)
    seg_setup(A)
    q_offset(A, sQt)

def d_setup_lane16(A):
    A.e("v_lshlrev_b32 v%d, 4, v%d" % (vLane16, vLn))
    A.e("v_bfe_u32 v%d, v%d, 4, 1\nv_lshlrev_b32 v%d, 13, v%d" % (vPat, vLn, vPat, vPat))
    A.e("v_lshrrev_b32 v16, 5, v%d\nv_lshl_add_u32 v%d, v16, 8, v%d\nv_and_b32 v16, 15, v%d\nv_lshl_add_u32 v%d, v16, 4, v%d" % (vLn, vPat, vPat, vLn, vPat, vPat))

def d_setup_valu(A):
    A.e("v_subrev_u32 v%d, s%d, v%d" % (vLaneAdj, sW4k, vPat))
    A.e("v_mov_b32 v%d, 0x5b800000" % vThr)
    A.e("v_lshrrev_b32 v16, 5, v%d\nv_lshlrev_b32 v16, 2, v16\nv_and_b32 v17, 31, v%d\nv_sub_u32 v%d, v16, v17" % (vLn, vLn, vBase))
    A.e("v_bfe_u32 v16, v%d, 4, 1\ns_mov_b32 s%d, %d\nv_mul_lo_u32 v16, v16, s%d" % (vLn, sT0, ACT_KS * 1024, sT0))
    A.e("v_lshrrev_b32 v17, 5, v%d\nv_lshl_add_u32 v16, v17, 8, v16\nv_and_b32 v17, 15, v%d\nv_lshl_add_u32 v%d, v17, 4, v16" % (vLn, vLn, vStC))

def d_setup(A):
    d_setup_scalar(A); d_setup_lane16(A); d_setup_valu(A)

def d_prologue_dma(A):
    def one(w, slot):
        off = slot * SLOT + (16384 if w == "V" else 0)
        for ins in dma_one(w, "s_add_u32 m0, s%d, %d" % (sW4k, off)): A.e(ins)
    for w, slot in (("K", 0), ("K", 1), ("K", 2), ("K", 3), ("V", 3), ("K", 4), ("V", 4)): one(w, slot)

def gen_d(A0, name, tail, entry_done=False, first_wait=24, after_z=None, before_final=None):
    A = A0 if isinstance(A0, Em) else Em(A0)
    if not entry_done:
        d_setup(A)
        stamp(A, 10)
        load_q(A)
        d_prologue_dma(A)
        zero_o(A)
    A.e("s_waitcnt vmcnt(%d)\ns_barrier" % first_wait)
    A.e("s_mov_b32 s%d, s%d\ns_mov_b32 s%d, s%d" % (sX[0], sW4k, sX[1], sW4k))
    A.e("v_add_u32 v%d, s%d, v%d" % (vAd[0], sX[0], vLaneAdj))
    for j in range(8): A.e("ds_read_b128 %s, v%d offset:%d" % (frag(j), vAd[0], koff(j)))
    A.label(name + "_seg")
    stamp(A, 11)
    emit_period(A, name, "M1", 1)
    emit_period(A, name, "Z", 0)
    if after_z: after_z(A)
    A.e("s_cmp_eq_u32 s%d, 0\ns_cbranch_scc1 %s_tail" % (sLeft, name))
    A.e(".p2align 6")
    A.label(name + "_loop")
    emit_period(A, name, "ST", 1)
    emit_period(A, name, "ST", 0, loop_back=name + "_loop")
    A.label(name + "_tail")
    stamp(A, 12)
    lab = A.newlabel(name + "_noq")
    A.e("s_cmp_eq_u32 s%d, 1\ns_cbranch_scc0 %s" % (sMode, lab))
    q_offset(A, sP)
    load_q(A)
    A.label(lab)
    emit_period(A, name, "L1", 1)
    emit_period(A, name, "L2", 0)
    stamp(A, 13)
    if before_final:
        lab = A.newlabel(name + "_nofin")
        A.e("s_cmp_eq_u32 s%d, 1\ns_cbranch_scc1 %s" % (sMode, lab))
        before_final(A)
        A.label(lab)
    A.e("s_nop 15")
    A.e("v_mov_b32 v%d, v%d\ns_nop 1\nv_permlane32_swap_b32 v%d, v%d\ns_nop 1\nv_add_f32 v%d, v%d, v%d" % (vT, vL, vL, vT, vL, vL, vT))
    A.e("s_cmp_eq_u32 s%d, 2\ns_cbranch_scc1 %s_merge" % (sMode, name))
    A.e("v_rcp_f32 v%d, v%d" % (vX, vL))
    A.e("s_cmp_eq_u32 s%d, 1\ns_cbranch_scc1 %s_part" % (sMode, name))
    def ctx_base(qt_reg):
        A.e("s_lshl_b32 s%d, s%d, 3\ns_lshl_b32 s%d, s%d, 1\ns_add_u32 s%d, s%d, s%d\ns_mul_i32 s%d, s%d, %d" % (sT0, qt_reg, sT1, sW, sT0, sT0, sT1, sT0, sT0, ACT_KS))
        A.e("s_lshl_b32 s%d, s%d, 3\ns_add_u32 s%d, s%d, s%d\ns_lshl_b32 s%d, s%d, 10\ns_add_u32 s%d, s%d, 0x%x" % (sT1, sH, sT0, sT0, sT1, sT0, sT0, sT0, sT0, ACT_OFF))
    ctx_base(sQt)
    for i in range(16):
        dt, a = i // 2, i % 2
        dst = vX + 4 + 4 * (i % 7)
        pack_tile(A, dt, a, dst, vX)
        A.e("s_add_u32 s%d, s%d, %d" % (sT1, sT0, dt * 1024))
        A.e("buffer_store_dwordx4 %s, v%d, s[%d:%d], s%d offen offset:%d sc1" % (vr(dst, 4), vStC, sWS, sWS + 3, sT1, a * 512))
    A.e("s_branch %s_fin" % name)
    A.label(name + "_part")
    A.e("s_lshl_b32 s%d, s%d, 16\ns_lshl_b32 s%d, s%d, 14\ns_add_u32 s%d, s%d, s%d\ns_add_u32 s%d, s%d, 0x%x" % (sT0, sPH, sT1, sW, sT0, sT0, sT1, sT0, sT0, PART_OFF))
    for i in range(16):
        dt, a = i // 2, i % 2
        dst = vX + 4 + 4 * (i % 7)
        pack_tile(A, dt, a, dst, vX)
        A.e("s_add_u32 s%d, s%d, %d" % (sT1, sT0, (i // 4) * 4096))
        A.e("buffer_store_dwordx4 %s, v%d, s[%d:%d], s%d offen offset:%d sc1" % (vr(dst, 4), vLane16, sWS, sWS + 3, sT1, (i % 4) * 1024))
    A.e("v_mov_b32 v%d, v%d\nv_mov_b32 v%d, v%d" % (vT, vM, vT + 1, vL))
    A.e("s_lshl_b32 s%d, s%d, 11\ns_lshl_b32 s%d, s%d, 9\ns_add_u32 s%d, s%d, s%d\ns_add_u32 s%d, s%d, 0x%x" % (sT0, sPH, sT1, sW, sT0, sT0, sT1, sT0, sT0, STAT_OFF))
    A.e("v_lshlrev_b32 v%d, 3, v%d" % (vT + 2, vLn))
    A.e("buffer_store_dwordx2 %s, v%d, s[%d:%d], s%d offen sc1" % (vr(vT, 2), vT + 2, sWS, sWS + 3, sT0))
    zero_o(A)
    A.e("s_waitcnt vmcnt(0)\ns_barrier")
    A.e("s_add_u32 s%d, s%d, %d" % (sT0, sPH, FL_PARTF))
    flag_add(A, "s%d" % sT0, vT, 68, name + "_pf")
    A.e("s_mov_b32 s%d, 0\ns_mov_b32 s%d, s%d\ns_mov_b32 s%d, 0\ns_lshl_b32 s%d, s%d, 2\ns_add_u32 s%d, s%d, 4" % (sMode, sQt, sP, sSegHb0, sSegN, sP, sSegN, sSegN))
    seg_setup(A)
    A.e("s_branch %s_seg" % name)
    A.label(name + "_merge")
    save = G.MEGA
    G.MEGA = True
    A.e("s_add_u32 s%d, s%d, %d" % (sT0, sPH, FL_PARTF))
    flag_wait(A, "s%d" % sT0, "1", vT, 68, name + "_pw")
    G.MEGA = save
    A.e("s_barrier")
    A.e("s_lshl_b32 s%d, s%d, 11\ns_lshl_b32 s%d, s%d, 9\ns_add_u32 s%d, s%d, s%d\ns_add_u32 s%d, s%d, 0x%x" % (sT0, sPH, sT1, sW, sT0, sT0, sT1, sT0, sT0, STAT_OFF))
    A.e("v_lshlrev_b32 v%d, 3, v%d" % (vT + 2, vLn))
    A.e("buffer_load_dwordx2 %s, v%d, s[%d:%d], s%d offen sc1" % (vr(vT + 4, 2), vT + 2, sWS, sWS + 3, sT0))
    A.e("s_lshl_b32 s%d, s%d, 16\ns_lshl_b32 s%d, s%d, 14\ns_add_u32 s%d, s%d, s%d\ns_add_u32 s%d, s%d, 0x%x" % (sT2, sPH, sT1, sW, sT2, sT2, sT1, sT2, sT2, PART_OFF))
    pregs = [16 + 4 * i for i in range(16)]
    for i in range(16):
        A.e("s_add_u32 s%d, s%d, %d" % (sT1, sT2, (i // 4) * 4096))
        A.e("buffer_load_dwordx4 %s, v%d, s[%d:%d], s%d offen offset:%d sc1" % (vr(pregs[i], 4), vLane16, sWS, sWS + 3, sT1, (i % 4) * 1024))
    A.e("s_waitcnt vmcnt(16)")
    mB, lB = vT + 4, vT + 5
    mN, eA, eB = vX, vX + 1, vX + 2
    fA, fB = vX + 2, 2
    A.e("v_max_f32 v%d, v%d, v%d" % (mN, vM, mB))
    A.e("v_sub_f32 v%d, v%d, v%d\nv_sub_f32 v%d, v%d, v%d" % (eA, vM, mN, eB, mB, mN))
    A.e("v_exp_f32 v%d, v%d\nv_exp_f32 v%d, v%d\ns_nop 0" % (eA, eA, eB, eB))
    A.e("v_mul_f32 v%d, v%d, v%d" % (eB, eB, lB))
    A.e("v_fma_f32 v%d, v%d, v%d, v%d" % (mN, vL, eA, eB))
    A.e("v_rcp_f32 v%d, v%d\ns_nop 0" % (mN, mN))
    A.e("v_mul_f32 v%d, v%d, v%d\nv_mul_f32 v%d, v%d, v%d" % (fB, eB, mN, fA, eA, mN))
    ctx_base(sQt)
    for i in range(16):
        dt, a = i // 2, i % 2
        o = vO + 16 * dt
        regs = [o + 4 * a, o + 4 * a + 2, o + 4 * (a + 2), o + 4 * (a + 2) + 2]
        A.e("s_waitcnt vmcnt(15)")
        pr = pregs[i]
        dst = vX + 4 + 4 * (i % 7)
        for q in range(4):
            A.e("v_lshlrev_b32 v%d, 16, v%d\nv_and_b32 v%d, 0xffff0000, v%d" % (vT + 8 + 2 * q, pr + q, vT + 9 + 2 * q, pr + q))
        for q in range(4):
            A.e("v_pk_mul_f32 %s, %s, %s op_sel_hi:[1,0]" % (vr(vT + 2 * q, 2), vr(regs[q], 2), vr(fA, 2)))
            A.e("v_pk_fma_f32 %s, %s, %s, %s op_sel_hi:[1,0,1]" % (vr(vT + 2 * q, 2), vr(vT + 8 + 2 * q, 2), vr(fB, 2), vr(vT + 2 * q, 2)))
        for q in range(4):
            A.e("v_cvt_pk_bf16_f32 v%d, v%d, v%d" % (dst + q, vT + 2 * q, vT + 2 * q + 1))
        A.e("s_add_u32 s%d, s%d, %d" % (sT1, sT0, dt * 1024))
        A.e("buffer_store_dwordx4 %s, v%d, s[%d:%d], s%d offen offset:%d sc1" % (vr(dst, 4), vStC, sWS, sWS + 3, sT1, a * 512))
    A.label(name + "_fin")
    stamp(A, 14)
    tail(A)

def d_subroutines(A, name):
    for stub, back, target in STUBS:
        A.label(stub)
        A.e("s_call_b64 s[%d:%d], %s\ns_branch %s" % (sRet, sRet + 1, target, back))
    del STUBS[:]
    if G.MEGA:
        A.label(name + "_hiwait")
        ok = A.newlabel(name + "_hok"); lp = A.newlabel(name + "_hpoll")
        A.e("s_add_u32 s66, s%d, %d\ns_lshl_b32 s66, s66, 7\ns_add_u32 s66, s66, 0x%x\ns_mov_b32 s67, 0x80000" % (sH, FL_QF, FLAG_OFF))
        A.label(lp)
        A.e("buffer_load_dword v%d, off, s[%d:%d], s66 sc1\ns_waitcnt vmcnt(0)\nv_readfirstlane_b32 s68, v%d\ns_sub_u32 s67, s67, 1" % (vT + 15, sWS, sWS + 3, vT + 15))
        A.e("s_cmp_eq_u32 s67, 0\ns_cbranch_scc1 %s\ns_cmp_ge_u32 s68, 8\ns_cbranch_scc1 %s\ns_sleep 1\ns_branch %s" % (ok, ok, lp))
        A.label(ok)
        A.e("s_setpc_b64 s[%d:%d]" % (sRet, sRet + 1))
    for par in (0, 1):
        emit_mask(A, name, par)
        emit_fallback(A, name, par)

def register(K):
    def k_d(A, name):
        kernel_begin(A, name); common_setup(A, name)
        def tail(E):
            E.e("s_waitcnt vmcnt(0) lgkmcnt(0)")
            stamp(E, 15)
            stamp_flush(E, 2)
        if G.STAMP: stamp(A, 0)
        gen_d(A, name, tail)
        A.label(name + "_done"); A.e("s_endpgm")
        d_subroutines(A, name)
    K["d"] = dict(name="attn_kernel", grid=256, block=256, lds=163840, gen=k_d, vgprs=384, accum=256)
```

```python
from mega_common import *

NST = 23
RING = 8
DA = 5
SLOT = 16384
sOut, sXs = 40, 44
sQ, sMt, sNb, sTile = 50, 51, 52, 53
sWw = 54
sT0, sT1, sT2, sT3 = 55, 56, 57, 58
sQ14, sQ32 = "h", "c"
sXo = 59
vLane16, vRdLo, vRdHi, vSt, vFl = 12, 3, 4, 5, 13
vStE = 15 + 0
vAcc = 16
vWf = 72
aAct = 96
aX = 176

def acc(st, nt): return vAcc + 4 * (st * 7 + nt)
def wf(s, nt): return vWf + 28 * s + 4 * nt
def act(stage, ks, st): return aAct + 16 * (stage % DA) + 8 * ks + 4 * st

class Sim:
    def __init__(self): self.ops = []
    def op(self, tag, n=1): self.ops += [tag] * n
    def wait_for(self, tags):
        last = -1
        for i, t in enumerate(self.ops):
            if t in tags: last = i
        return min(63, len(self.ops) - 1 - last)

def kstep_reg(stage, ks):
    if stage < 7: return sQ14, 128 + 2 * stage + ks
    return sQ32, 2 * (stage - 7) + ks

def w_dma(stage):
    out = []
    for ks in range(2):
        reg, c = kstep_reg(stage, ks)
        for pc in range(2):
            out.append(["s_add_u32 m0, s%d, %d" % (sWw, (stage % RING) * SLOT + ks * 8192 + pc * 1024),
                        "s_add_u32 s%d, s%d, %d" % (sT0, (60 if reg == sQ14 else 61) + 2 * pc, c * 28 * 1024),
                        "buffer_load_dwordx4 v%d, s[%d:%d], s%d offen lds" % (vLane16, sWS, sWS + 3, sT0)])
    return out

def a_ld(stage):
    out = []
    for ks in range(2):
        reg, c = kstep_reg(stage, ks)
        for st in range(2):
            out.append(["s_add_u32 s%d, s%d, %d" % (sT1, 64 if reg == sQ14 else 65, c * 1024 + st * ACT_KS * 1024),
                        "buffer_load_dwordx4 %s, v%d, s[%d:%d], s%d offen" % (ar(act(stage, ks, st), 4), vLane16, sWS, sWS + 3, sT1)])
    return out

def wreads(setn, stage, ks):
    o = (stage % RING) * SLOT + ks * 8192
    reg = vRdLo if o < 65536 else vRdHi
    return ["ds_read_b128 %s, v%d offset:%d" % (vr(wf(setn, nt), 4), reg, o % 65536 + nt * 1024) for nt in range(7)]

def e_setup(A, vtmp):
    A.e("s_and_b32 s%d, s2, 7\ns_lshr_b32 s%d, s2, 3" % (sT0, sT1))
    A.e("s_lshr_b32 s%d, s%d, 1" % (sQ, sT0))
    A.e("s_and_b32 s%d, s%d, 1\ns_lshl_b32 s%d, s%d, 3\ns_lshr_b32 s%d, s%d, 2\ns_add_u32 s%d, s%d, s%d" % (sT2, sT0, sT2, sT2, sT3, sT1, sMt, sT2, sT3))
    A.e("s_and_b32 s%d, s%d, 3" % (sNb, sT1))
    A.e("s_lshl_b32 s%d, s%d, 2\ns_add_u32 s%d, s%d, s%d" % (sTile, sMt, sTile, sTile, sNb))
    srd(A, sOut, P["out"], P["out"] + 1, S * M * 2)
    srd(A, sXs, P["x"], P["x"] + 1, S * M * 2)
    A.e("s_mul_i32 s%d, s%d, 7\ns_lshl_b32 s%d, s%d, 1\ns_add_u32 s%d, s%d, s%d\ns_lshl_b32 s%d, s%d, 10\ns_add_u32 s%d, s%d, 0x%x" % (sT0, sNb, sT1, sW, sT0, sT0, sT1, sT0, sT0, sT0, sT0, WF_OFF))
    A.e("s_mul_i32 s%d, s%d, %d\ns_add_u32 s60, s%d, s%d" % (sT1, sQ, 14 * 28 * 1024, sT0, sT1))
    A.e("s_mul_i32 s%d, s%d, %d\ns_add_u32 s61, s%d, s%d" % (sT1, sQ, 32 * 28 * 1024, sT0, sT1))
    A.e("s_add_u32 s62, s60, 1024\ns_add_u32 s63, s61, 1024")
    A.e("s_cmp_eq_u32 s%d, 3\ns_cselect_b32 s62, 0x70000000, s62\ns_cselect_b32 s63, 0x70000000, s63" % sW)
    A.e("s_lshl_b32 s%d, s%d, 11" % (sWw, sW))
    A.e("s_lshl_b32 s%d, s%d, 3\ns_lshl_b32 s%d, s%d, 1\ns_add_u32 s%d, s%d, s%d\ns_mul_i32 s%d, s%d, %d\ns_lshl_b32 s%d, s%d, 10\ns_add_u32 s%d, s%d, 0x%x" %
        (sT0, sMt, sT1, sW, sT0, sT0, sT1, sT0, sT0, ACT_KS, sT0, sT0, sT0, sT0, ACT_OFF))
    A.e("s_mul_i32 s%d, s%d, %d\ns_add_u32 s64, s%d, s%d" % (sT1, sQ, 14 * 1024, sT0, sT1))
    A.e("s_lshl_b32 s%d, s%d, 15\ns_add_u32 s65, s%d, s%d" % (sT1, sQ, sT0, sT1))
    A.e("v_and_b32 v%d, 15, v%d\nv_lshrrev_b32 v%d, 4, v%d\ns_movk_i32 s%d, 896\nv_mul_lo_u32 v%d, v%d, s%d\nv_lshl_add_u32 v%d, v%d, 3, v%d" % (vtmp, vLn, vtmp + 1, vLn, sT0, vtmp, vtmp, sT0, vtmp + 1, vtmp + 1, vtmp))
    A.e("s_lshl_b32 s%d, s%d, 7\ns_lshl_b32 s%d, s%d, 5\ns_add_u32 s%d, s%d, s%d\ns_mul_i32 s%d, s%d, 896\ns_mul_i32 s%d, s%d, 224\ns_add_u32 s%d, s%d, s%d" %
        (sT0, sMt, sT1, sW, sT0, sT0, sT1, sT0, sT0, sT1, sNb, sXo, sT0, sT1))

def poll(A, name, line_expr_instrs, line_reg, target, w0only=True):
    if not G.MEGA: return
    ok = A.newlabel(name + "_ok"); lp = A.newlabel(name + "_poll")
    if w0only: A.e("s_cmp_lg_u32 s%d, 0\ns_cbranch_scc1 %s" % (sW, ok))
    for ins in line_expr_instrs: A.e(ins)
    A.e("s_lshl_b32 s%d, s%d, 7\ns_add_u32 s%d, s%d, 0x%x\ns_mov_b32 s%d, 0x80000" % (line_reg, line_reg, line_reg, line_reg, FLAG_OFF, sT3))
    A.label(lp)
    A.e("buffer_load_dword v%d, off, s[%d:%d], s%d sc1\ns_waitcnt vmcnt(0)\nv_readfirstlane_b32 s%d, v%d\ns_sub_u32 s%d, s%d, 1" % (vFl, sWS, sWS + 3, line_reg, sT2, vFl, sT3, sT3))
    A.e("s_cmp_eq_u32 s%d, 0\ns_cbranch_scc1 %s\ns_cmp_ge_u32 s%d, %d\ns_cbranch_scc1 %s\ns_sleep 1\ns_branch %s" % (sT3, ok, sT2, target, ok, lp))
    A.label(ok)
    if w0only: A.e("s_barrier")

def wf_check(A, name):
    ok = A.newlabel(name + "_wfok"); lp = A.newlabel(name + "_wfpoll")
    A.e("s_cmp_lg_u32 s%d, 0\ns_cbranch_scc1 %s" % (sW, ok))
    srd(A, sOut, P["dbg"], P["dbg"] + 1, 256)
    A.e("s_mov_b32 s%d, 0x40000" % sT3)
    A.label(lp)
    A.e("buffer_load_dword v%d, off, s[%d:%d], 0 offset:128 sc1\ns_waitcnt vmcnt(0)\nv_readfirstlane_b32 s%d, v%d\ns_sub_u32 s%d, s%d, 1" % (vFl, sOut, sOut + 3, sT2, vFl, sT3, sT3))
    A.e("s_cmp_eq_u32 s%d, 0\ns_cbranch_scc1 %s\ns_cmp_ge_u32 s%d, 128\ns_cbranch_scc1 %s\ns_sleep 4\ns_branch %s" % (sT3, ok, sT2, ok, lp))
    A.label(ok)

def e_early(A, name, vtmp):
    e_setup(A, vtmp)
    sim = Sim()
    for s in range(RING - 1):
        for g in w_dma(s):
            for ins in g: A.e(ins)
        sim.op("W%d" % s, 4)
    poll(A, name + "_guc", ["s_lshr_b32 s66, s%d, 1\ns_add_u32 s66, s66, %d" % (sMt, FL_GUC)], 66, 14)
    for s in range(DA - 1):
        for g in a_ld(s):
            for ins in g: A.e(ins)
        sim.op("A%d" % s, 4)
    return sim

def gen_e(A0, name, tail, sim=None, vtmp=8, extra_ops=0):
    A = A0 if isinstance(A0, Em) else Em(A0)
    if sim is None:
        A.e("v_lshlrev_b32 v%d, 4, v%d" % (vLane16, vLn))
        sim = e_early(A, name, vtmp)
    sim.op("other", extra_ops)
    srd(A, sOut, P["out"], P["out"] + 1, S * M * 2)
    srd(A, sXs, P["x"], P["x"] + 1, S * M * 2)
    stamp(A, 20)
    A.e("v_mov_b32 v%d, v%d\nv_mov_b32 v%d, v%d\nv_add_u32 v%d, 0x10000, v%d" % (vSt, vtmp + 1, vRdLo, vLane16, vRdHi, vLane16))
    A.e("s_waitcnt vmcnt(%d)\ns_barrier" % sim.wait_for(["W0", "A0"]))
    for ins in wreads(0, 0, 0): A.e(ins)
    stamp(A, 21)
    for kk in range(2 * NST):
        s, ks = kk // 2, kk % 2
        sc = []
        if ks == 1 and s + 1 < NST:
            if s + DA - 1 == 7:
                poll(A, name + "_ctx", ["s_lshl_b32 s66, s%d, 2\ns_add_u32 s66, s66, s%d\ns_add_u32 s66, s66, %d" % (sMt, sQ, FL_CTXC)], 66, 4)
            A.e("s_waitcnt vmcnt(%d)\ns_barrier" % sim.wait_for(["W%d" % (s + 1), "A%d" % (s + 1)]))
            if s + DA - 1 < NST:
                sc += a_ld(s + DA - 1); sim.op("A%d" % (s + DA - 1), 4)
            if s + RING - 1 < NST:
                sc += w_dma(s + RING - 1); sim.op("W%d" % (s + RING - 1), 4)
        A.e("s_waitcnt lgkmcnt(0)")
        gaps = [[] for _ in range(14)]
        if kk + 1 < 2 * NST:
            nxt = wreads((kk + 1) % 2, (kk + 1) // 2, (kk + 1) % 2)
            spread(gaps, [[r] for r in nxt], 0, 8)
        spread(gaps, [[ins] for g in sc for ins in g], 0, 14)
        n = 0
        for nt in range(7):
            for st in range(2):
                c = "0" if kk == 0 else vr(acc(st, nt), 4)
                A.e("v_mfma_f32_16x16x32_bf16 %s, %s, %s, %s" % (vr(acc(st, nt), 4), vr(wf(kk % 2, nt), 4), ar(act(s, ks, st), 4), c))
                for ins in gaps[n]: A.e(ins)
                n += 1
    stamp(A, 22)
    A.e("s_nop 7\ns_nop 1")
    A.e("s_lshl_b32 s%d, s%d, 2\ns_add_u32 s%d, s%d, s%d\ns_lshl_b32 s%d, s%d, 2\ns_add_u32 s%d, s%d, s%d\ns_mul_i32 s%d, s%d, %d\ns_add_u32 s%d, s%d, 0x%x" %
        (sT0, sTile, sT0, sT0, sW, sT0, sT0, sT0, sT0, sQ, sT0, sT0, 14 * 1024, sT0, sT0, OPART_OFF))
    for i in range(14):
        A.e("s_add_u32 s%d, s%d, %d" % (sT1, sT0, i * 1024))
        A.e("buffer_store_dwordx4 %s, v%d, s[%d:%d], s%d offen sc1" % (vr(vAcc + 4 * i, 4), vLane16, sWS, sWS + 3, sT1))
    A.e("s_lshl_b32 s%d, s%d, 7\ns_lshl_b32 s%d, s%d, 5\ns_add_u32 s%d, s%d, s%d\ns_mul_i32 s%d, s%d, 896\ns_mul_i32 s%d, s%d, 224\ns_add_u32 s%d, s%d, s%d" %
        (sT2, sMt, sT3, sQ, sT2, sT2, sT3, sT2, sT2, sT3, sNb, sXo, sT2, sT3))
    A.e("s_waitcnt vmcnt(0)")
    A.e("s_add_u32 s66, s%d, %d\ns_lshl_b32 s66, s66, 7\ns_add_u32 s66, s66, 0x%x" % (sTile, FL_OUTC, FLAG_OFF))
    A.e("v_mov_b32 v8, 1\ns_mov_b64 s[68:69], exec\ns_mov_b64 exec, 1")
    A.e("buffer_atomic_add v8, off, s[%d:%d], s66" % (sWS, sWS + 3))
    A.e("s_mov_b64 exec, s[68:69]")
    for k in range(4):
        r = 60 + 0
        A.e("s_add_u32 s%d, s%d, %d" % (sT0, sW, 4 * k))
        A.e("s_cmp_ge_u32 s%d, 7\ns_cselect_b32 s%d, %d, 0\ns_cselect_b32 s%d, 7, 0\ns_sub_u32 s%d, s%d, s%d\ns_lshl_b32 s%d, s%d, 5\ns_add_u32 s%d, s%d, s%d\ns_add_u32 s%d, s%d, s%d" %
            (sT0, sT1, 16 * 896, sT2, sT2, sT0, sT2, sT2, sT2, sT1, sT1, sT2, 60 + k, sT1, sXo))
        A.e("s_cmp_ge_u32 s%d, 14\ns_cselect_b32 s%d, 0x70000000, s%d" % (sT0, 60 + k, 60 + k))
        A.e("buffer_load_dwordx2 %s, v%d, s[%d:%d], s%d offen" % (vr(200 + 2 * k, 2), vSt, sXs, sXs + 3, 60 + k))
    save = G.MEGA; G.MEGA = True
    poll(A, name + "_oc", ["s_add_u32 s66, s%d, %d" % (sTile, FL_OUTC)], 66, 16, w0only=False)
    G.MEGA = save
    stamp(A, 23)
    A.e("s_lshl_b32 s%d, s%d, 2\ns_add_u32 s%d, s%d, s%d\ns_mul_i32 s%d, s%d, %d\ns_lshl_b32 s%d, s%d, 10\ns_add_u32 s%d, s%d, s%d\ns_add_u32 s%d, s%d, 0x%x" %
        (sT0, sTile, sT0, sT0, sQ, sT0, sT0, 4 * 14 * 1024, sT1, sW, sT0, sT0, sT1, sT0, sT0, OPART_OFF))
    for k in range(4):
        for src in range(4):
            A.e("s_add_u32 s%d, s%d, %d" % (sT1, sT0, src * 14 * 1024 + k * 4096))
            A.e("buffer_load_dwordx4 %s, v%d, s[%d:%d], s%d offen sc1" % (vr(72 + 16 * k + 4 * src, 4), vLane16, sWS, sWS + 3, sT1))
    for k in range(4):
        b = 72 + 16 * k
        A.e("s_waitcnt vmcnt(%d)" % (4 * (3 - k) + k))
        for q in range(4):
            A.e("v_add_f32 v%d, v%d, v%d\nv_add_f32 v%d, v%d, v%d\nv_add_f32 v%d, v%d, v%d" % (b + q, b + q, b + 4 + q, b + 8 + q, b + 8 + q, b + 12 + q, b + q, b + q, b + 8 + q))
        xr = 200 + 2 * k
        A.e("v_lshlrev_b32 v%d, 16, v%d\nv_and_b32 v%d, 0xffff0000, v%d\nv_lshlrev_b32 v%d, 16, v%d\nv_and_b32 v%d, 0xffff0000, v%d" % (b + 4, xr, b + 5, xr, b + 6, xr + 1, b + 7, xr + 1))
        for q in range(4): A.e("v_add_f32 v%d, v%d, v%d" % (b + q, b + q, b + 4 + q))
        A.e("v_cvt_pk_bf16_f32 v%d, v%d, v%d\nv_cvt_pk_bf16_f32 v%d, v%d, v%d" % (b + 8, b, b + 1, b + 9, b + 2, b + 3))
        A.e("buffer_store_dwordx2 %s, v%d, s[%d:%d], s%d offen" % (vr(b + 8, 2), vSt, sOut, sOut + 3, 60 + k))
    stamp(A, 24)
    A.label(name + "_eexit")
    tail(A)

def register(K):
    def k_e(A, name):
        kernel_begin(A, name); common_setup(A, name)
        def tail(E):
            E.e("s_waitcnt vmcnt(0) lgkmcnt(0)")
            stamp(E, 25)
            if G.STAMP:
                stamp_flush(E, 3)
        if G.STAMP: stamp(A, 0)
        gen_e(A, name, tail)
        A.label(name + "_done"); A.e("s_endpgm")
    K["e"] = dict(name="out_kernel", grid=256, block=256, lds=131072, gen=k_e, vgprs=448, accum=256)
```

```python
from mega_common import *

sA, sB, sA2, sB2, sB3, sDbg = 8, 12, 16, 20, 24, 64
sAcur, sAstr, sAnext, sBg, sBs4, sBs12 = 28, 29, 30, 31, 32, 33
sAwr, sAw0, sAwEnd, sRd0, sRd1, sLeft = 34, 35, 36, 37, 38, 39
sT0, sZero, sWrap, sBw0 = 40, 41, 42, 43
sOb1, sOb2, sOb3 = 44, 45, 46
sTy1, sH, sM16, sWa, sWw = 47, 48, 49, 50, 51
sAcurC, sBgC1, sBgC2 = 52, 53, 54
sQc = 56
sHB, sMB = 58, 59
sFb = 19
sT1, sT2, sT3 = 60, 61, 62
vDA, vDB, vA0b, vA1b, vA0, vA1, vB = 2, 3, 4, 5, 6, 7, 8
vSt1, vStQ, vFl = 12, 13, 14
A_SLOT = 32768
B_BASE = 3 * A_SLOT
B_SLOT = 16384

def act_frag(st, i): return ar(64 * st + 4 * i, 4)
def wgt_frag(st, i): return ar(64 * st + 32 + 4 * i, 4)
def wgt_half(st, i, h): return ar(64 * st + 32 + 4 * i + 2 * h, 2)

def accB(i, j, vt):
    if vt == 0: Pn, half = (i // 2) * 8 + j, i % 2
    else: Pn, half = (j // 2) * 8 + i, j % 2
    if Pn < 30: return ("v", 16 + 8 * Pn + 4 * half)
    return ("a", 128 + 8 * (Pn - 30) + 4 * half)
def rt(x): return (vr if x[0] == "v" else ar)(x[1], 4)

FREE1 = [16 + 8 * k + 4 for k in range(30)] + [16, 24]
def accC1(i, j): return FREE1[(i // 2) * 16 + (i % 2) * 8 + j] if False else FREE1[((i // 2) * 8 + j) * 2 + (i % 2)]
_q_packed = [FREE1[2 * k] for k in range(16)]
FREE2 = [r for r in range(16, 256, 4) if r not in _q_packed and not 96 <= r < 128][:32]
def accC2(i, j): return FREE2[j * 4 + i]

def dma_A(half, per_half):
    out = []
    total = 2 * per_half
    for k in range(per_half):
        j = per_half * half + k
        g = ["s_add_u32 m0, s%d, %d" % (sAwr, j * 4096),
             "buffer_load_dwordx4 v%d, s[%d:%d], s%d offen lds" % (vDA, sA, sA + 3, sAcur),
             "s_add_u32 s%d, s%d, s%d" % (sAcur, sAcur, sAstr if j < total - 1 else sAnext)]
        out.append(g)
    if half == 1:
        out.append(["s_add_u32 s%d, s%d, %d" % (sAwr, sAwr, A_SLOT), "s_cmp_ge_u32 s%d, s%d" % (sAwr, sAwEnd),
                    "s_cselect_b32 s%d, s%d, s%d" % (sAwr, sAw0, sAwr)])
    return out

def dma_B(slot):
    out = []
    rows = [0, 4, 16, 20]
    inc = [sBs4, sBs12, sBs4, sBs12]
    for k in range(4):
        out.append(["s_add_u32 m0, s%d, %d" % (sBw0, slot * B_SLOT + rows[k] * 256),
                    "buffer_load_dwordx4 v%d, s[%d:%d], s%d offen lds" % (vDB, sB, sB + 3, sBg),
                    "s_add_u32 s%d, s%d, s%d" % (sBg, sBg, inc[k])])
    return out

def rd_addr(s_next):
    reg, va, vb = (sRd0, vA0, vA0b) if s_next % 2 == 0 else (sRd1, vA1, vA1b)
    return (["v_add_u32 v%d, s%d, v%d" % (va, reg, vb)],
            ["s_add_u32 s%d, s%d, %d" % (reg, reg, A_SLOT), "s_cmp_ge_u32 s%d, s%d" % (reg, sWrap),
             "s_cselect_b32 s%d, s%d, s%d" % (reg, sZero, reg)])

def frag_reads(s_next, kind):
    st = s_next % 2
    slot = s_next % 4
    va = vA0 if s_next % 2 == 0 else vA1
    out = []
    acts = ["ds_read_b128 %s, v%d offset:%d" % (act_frag(st, i), va, i * 2048) for i in range(8)]
    w = []
    if kind == "B":
        for i in range(8):
            o = slot * B_SLOT + (i // 4) * 8192
            w.append("ds_read_b64_tr_b16 %s, v%d offset:%d" % (wgt_half(st, i, 0), vB + i % 4, o))
            w.append("ds_read_b64_tr_b16 %s, v%d offset:%d" % (wgt_half(st, i, 1), vB + i % 4, o + 1024))
    elif kind == "C1":
        for i in range(4):
            o = slot * B_SLOT
            w.append("ds_read_b64_tr_b16 %s, v%d offset:%d" % (wgt_half(st, i, 0), vB + i, o))
            w.append("ds_read_b64_tr_b16 %s, v%d offset:%d" % (wgt_half(st, i, 1), vB + i, o + 1024))
    else:
        for i in range(4):
            o = slot * B_SLOT + (i // 2) * 8192
            w.append("ds_read_b64_tr_b16 %s, v%d offset:%d" % (wgt_half(st, i, 0), vB + i % 2, o))
            w.append("ds_read_b64_tr_b16 %s, v%d offset:%d" % (wgt_half(st, i, 1), vB + i % 2, o + 1024))
    out = w[:2] + acts + w[2:]
    return out

def substep(A, s, kind, nxt_kind, vt=0, first=False, waitn=16, a_per_half=4, dma=True, extra_vm=None, pre=None, scalar_extra=None, post_bar=None, pre_bar=None):
    st = s % 2
    nW = 8 if kind == "B" else 4
    n = 8 * nW
    if pre: pre()
    A.e("s_waitcnt vmcnt(%d) lgkmcnt(0)" % waitn)
    if pre_bar: pre_bar(A)
    A.e("s_barrier")
    if post_bar: post_bar()
    gaps = [[] for _ in range(n)]
    addr, adv = rd_addr(s + 1)
    gaps[0] += addr
    reads = frag_reads(s + 1, nxt_kind)
    spread(gaps, [[r] for r in reads], 1, (n * 5) // 8)
    sc = []
    if dma:
        if dma != "B": sc += dma_A((s + 1) % 2, a_per_half)
        if dma != "A": sc += dma_B(s % 4)
    sc.append(adv)
    if scalar_extra: sc += scalar_extra
    if extra_vm: sc += extra_vm
    flat = [[ins] for g in sc for ins in g]
    spread(gaps, flat, 0, n - 1)
    k = 0
    for i in range(nW):
        for j in range(8):
            if kind == "B": a = rt(accB(i, j, vt))
            elif kind == "C1": a = vr(accC1(i, j), 4)
            else: a = vr(accC2(i, j), 4)
            sa, sb = (act_frag(st, j), wgt_frag(st, i)) if (kind == "B" and vt) else (wgt_frag(st, i), act_frag(st, j))
            A.e("v_mfma_f32_16x16x32_bf16 %s, %s, %s, %s" % (a, sa, sb, "0" if first else a))
            for ins in gaps[k]: A.e(ins)
            k += 1

def ln_loads(A, name, rows_reg=None, b=32):
    if rows_reg is None: A.e("s_lshl_b32 s%d, s2, 3" % sT0)
    else: A.e("s_mov_b32 s%d, s%d" % (sT0, rows_reg))
    A.e("s_lshl_b32 s%d, s%d, 1\ns_add_u32 s%d, s%d, s%d\nv_mov_b32 v%d, s%d" % (sT1, sW, sT0, sT0, sT1, b, sT0))
    A.e("s_movk_i32 s%d, 896\nv_mul_lo_u32 v%d, v%d, s%d\nv_lshl_add_u32 v%d, v%d, 4, v%d" % (sT0, b, b, sT0, b, vLn, b))
    A.e("v_cmp_gt_u32 vcc, 56, v%d\nv_mov_b32 v%d, 0x40000000\ns_nop 0\nv_cndmask_b32 v%d, v%d, v%d, vcc" % (vLn, b + 1, b, b + 1, b))
    srd(A, 64, P["x"], P["x"] + 1, S * M * 2)
    A.e("buffer_load_dwordx4 %s, v%d, s[64:67], 0 offen" % (vr(b + 4, 4), b))
    A.e("buffer_load_dwordx4 %s, v%d, s[64:67], 0 offen offset:896" % (vr(b + 8, 4), b))

def ln_phase(A, name, loads_done=None, bs=(32,), zero_flags=True):
    if loads_done is None: ln_loads(A, name)
    xns = 68
    A.e("s_add_u32 s%d, s%d, 0x%x\ns_addc_u32 s%d, s%d, 0" % (sT0, P["ws"], XN_OFF, sT1, P["ws"] + 1))
    srd(A, xns, sT0, sT1, S * M * 2)
    rows = []
    for b in bs:
        R0 = b + 4
        rows.append((R0, R0 + 8, R0 + 24, R0 + 26, R0 + 28, R0 + 30))
        rows.append((R0 + 4, R0 + 16, R0 + 25, R0 + 27, R0 + 29, R0 + 33))
    A.e("s_waitcnt vmcnt(%d)" % (loads_done or 0))
    def allred(regs, tmp):
        for sh in (8, 4, 2, 1):
            A.e("s_nop 1")
            for r in regs: A.e("v_add_f32_dpp v%d, v%d, v%d row_ror:%d row_mask:0xf bank_mask:0xf" % (r, r, r, sh))
        for op in ("v_permlane16_swap_b32", "v_permlane32_swap_b32"):
            for r, t in zip(regs, tmp): A.e("v_mov_b32 v%d, v%d" % (t, r))
            A.e("s_nop 1")
            for r, t in zip(regs, tmp): A.e("%s v%d, v%d" % (op, r, t))
            A.e("s_nop 1")
            for r, t in zip(regs, tmp): A.e("v_add_f32 v%d, v%d, v%d" % (r, r, t))
    def rnd(r): A.e("v_cvt_pk_bf16_f32 v%d, v%d, v%d\nv_lshlrev_b32 v%d, 16, v%d" % (r, r, r, r, r))
    for raw, fl, sm, tp, ax, sc in rows:
        for i in range(4):
            A.e("v_lshlrev_b32 v%d, 16, v%d\nv_and_b32 v%d, 0xffff0000, v%d" % (fl + 2 * i, raw + i, fl + 2 * i + 1, raw + i))
        A.e("v_add_f32 v%d, v%d, v%d" % (sm, fl, fl + 1))
        for i in range(2, 8): A.e("v_add_f32 v%d, v%d, v%d" % (sm, sm, fl + i))
    allred([r[2] for r in rows], [r[3] for r in rows])
    A.e("v_cmp_gt_u32 vcc, 56, v%d" % vLn)
    for raw, fl, sm, tp, ax, sc in rows:
        A.e("v_mul_f32 v%d, 0x3b124925, v%d" % (sm, sm))
        A.e("v_sub_f32 v%d, v%d, v%d\nv_mul_f32 v%d, v%d, v%d" % (tp, fl, sm, ax, tp, tp))
        for i in range(1, 8):
            A.e("v_sub_f32 v%d, v%d, v%d\nv_fmac_f32 v%d, v%d, v%d" % (tp, fl + i, sm, ax, tp, tp))
        A.e("v_cndmask_b32 v%d, 0, v%d, vcc" % (ax, ax))
    allred([r[4] for r in rows], [r[3] for r in rows])
    for raw, fl, sm, tp, ax, sc in rows:
        A.e("v_mul_f32 v%d, 0x3b124925, v%d" % (ax, ax)); rnd(ax)
        A.e("v_add_f32 v%d, 0x3727c5ac, v%d" % (ax, ax)); rnd(ax)
        A.e("v_sqrt_f32 v%d, v%d" % (ax, ax))
    A.e("s_nop 0")
    for raw, fl, sm, tp, ax, sc in rows:
        rnd(ax); rnd(sm)
        A.e("v_rcp_f32 v%d, v%d" % (tp, ax))
    A.e("s_nop 0")
    for k, (raw, fl, sm, tp, ax, sc) in enumerate(rows):
        t0, t1, t2 = sc, sc + 1, sc + 2
        for i in range(4):
            a, bb = fl + 2 * i, fl + 2 * i + 1
            A.e("v_sub_f32 v%d, v%d, v%d\nv_sub_f32 v%d, v%d, v%d" % (a, a, sm, bb, bb, sm))
            A.e("v_cvt_pk_bf16_f32 v%d, v%d, v%d\nv_lshlrev_b32 v%d, 16, v%d\nv_and_b32 v%d, 0xffff0000, v%d" % (t0, a, bb, a, t0, bb, t0))
            for r in (a, bb):
                A.e("v_mul_f32 v%d, v%d, v%d\nv_fma_f32 v%d, -v%d, v%d, v%d\nv_fma_f32 v%d, v%d, v%d, v%d" % (t1, r, tp, t2, t1, ax, r, r, t2, tp, t1))
            A.e("v_cvt_pk_bf16_f32 v%d, v%d, v%d" % (raw + i, a, bb))
        b = bs[k // 2]
        A.e("buffer_store_dwordx4 %s, v%d, s[%d:%d], 0 offen%s sc1" % (vr(raw, 4), b, xns, xns + 3, " offset:896" if k % 2 else ""))
    if not zero_flags: return
    t0, t1 = bs[0] + 34, bs[0] + 35
    lab = A.newlabel(name + "_nozero")
    A.e("s_cmp_lg_u32 s%d, 0\ns_cbranch_scc1 %s" % (sW, lab))
    A.e("s_lshl_b32 s%d, s2, 7\ns_add_u32 s%d, s%d, 0x%x" % (sT0, sT0, sT0, FLAG_OFF))
    A.e("v_mov_b32 v%d, 0\nv_lshlrev_b32 v%d, 15, v%d" % (t0, t1, vLn))
    A.e("s_mov_b64 s[60:61], exec\ns_mov_b64 exec, 3")
    A.e("buffer_store_dword v%d, v%d, s[%d:%d], s%d offen sc1" % (t0, t1, sWS, sWS + 3, sT0))
    A.e("s_mov_b64 exec, s[60:61]")
    A.label(lab)

RL_LDS = 2 * 32768

RL_LDS = 2 * 32768

def relayout_issue(A, name, ks="s2", lds=None):
    RL_LDS = globals()["RL_LDS"] if lds is None else lds
    A.e("s_cmp_ge_u32 %s, 128" % ks)
    A.e("s_cselect_b32 s68, s%d, s%d\ns_cselect_b32 s69, s%d, s%d\ns_cselect_b32 s%d, 128, 0\ns_mov_b32 s70, 0x%x\ns_cselect_b32 s70, 0x%x, s70\ns_and_b32 s69, s69, 0xffff\ns_mov_b32 s71, 0x20000" %
        (P["wd"], P["wo"], P["wd"] + 1, P["wo"] + 1, sT2, H * D * M * 2, F * M * 2))
    A.e("s_sub_u32 s%d, %s, s%d\ns_mul_i32 s%d, s%d, %d\ns_mul_i32 s%d, s%d, 7168\ns_add_u32 s%d, s%d, s%d" % (sT2, ks, sT2, sT2, sT2, 32 * 896, sT3, sW, sT2, sT2, sT3))
    A.e("s_cmp_ge_u32 %s, 184\ns_cselect_b32 s%d, 0x70000000, s%d" % (ks, sT2, sT2))
    A.e("v_lshlrev_b32 v30, 4, v%d" % vLn)
    for i in range(7):
        A.e("s_add_u32 m0, s%d, %d\ns_add_u32 s%d, s%d, %d" % (sT3, RL_LDS + i * 1024, sT0, sT2, i * 1024))
        A.e("buffer_load_dwordx4 v30, s[68:71], s%d offen lds" % sT0)

def relayout_reads(A, lds=None, R=84):
    RL_LDS = globals()["RL_LDS"] if lds is None else lds
    A.e("v_lshrrev_b32 v80, 4, v%d\nv_bfe_u32 v81, v%d, 2, 2\nv_lshl_add_u32 v80, v80, 2, v81\ns_movk_i32 s%d, 896\nv_mul_lo_u32 v80, v80, s%d" % (vLn, vLn, sT0, sT0))
    A.e("v_and_b32 v81, 3, v%d\nv_lshl_add_u32 v80, v81, 3, v80\ns_mul_i32 s%d, s%d, 224\ns_add_u32 s%d, s%d, %d\nv_add_u32 v80, s%d, v80" % (vLn, sT0, sW, sT0, sT0, RL_LDS, sT0))
    for i in range(7):
        A.e("ds_read_b64_tr_b16 %s, v80 offset:%d\nds_read_b64_tr_b16 %s, v80 offset:%d" % (vr(R + 4 * i, 2), i * 32, vr(R + 2 + 4 * i, 2), i * 32 + 16 * 896))

def relayout_stores(A, ks="s2", R=84):
    A.e("s_mul_i32 s%d, %s, 28\ns_mul_i32 s%d, s%d, 7\ns_add_u32 s%d, s%d, s%d\ns_lshl_b32 s%d, s%d, 10\ns_add_u32 s%d, s%d, 0x%x" % (sT0, ks, sT1, sW, sT0, sT0, sT1, sT0, sT0, sT0, sT0, WF_OFF))
    A.e("s_cmp_ge_u32 %s, 184\ns_cselect_b32 s%d, 0x70000000, s%d" % (ks, sT0, sT0))
    A.e("v_lshlrev_b32 v81, 4, v%d" % vLn)
    for i in range(7):
        A.e("s_add_u32 s%d, s%d, %d\nbuffer_store_dwordx4 %s, v81, s[%d:%d], s%d offen sc1" % (sT1, sT0, i * 1024, vr(R + 4 * i, 4), sWS, sWS + 3, sT1))

def xn_add(A, name, idx_reg):
    lab = A.newlabel(name + "_noxn")
    A.e("s_cmp_lg_u32 s%d, 0\ns_cbranch_scc1 %s" % (sW, lab))
    A.e("s_lshl_b32 s%d, s%d, 4\nv_mov_b32 v%d, 1\ns_mov_b64 s[60:61], exec\ns_mov_b64 exec, 1" % (sT0, idx_reg, vFl))
    A.e("buffer_atomic_add v%d, off, s[%d:%d], s%d" % (vFl, sDbg, sDbg + 3, sT0))
    A.e("s_mov_b64 exec, s[60:61]")
    A.label(lab)

def pack_pair_inplace(A, lo, hi, scale=None):
    if scale is not None:
        for r in (lo, lo + 2, hi, hi + 2):
            A.e("v_pk_mul_f32 %s, %s, s[%d:%d]" % (vr(r, 2), vr(r, 2), scale, scale + 1))
    A.e("v_cvt_pk_bf16_f32 v%d, v%d, v%d" % (lo, lo, lo + 1))
    A.e("v_cvt_pk_bf16_f32 v%d, v%d, v%d" % (lo + 1, lo + 2, lo + 3))
    A.e("v_cvt_pk_bf16_f32 v%d, v%d, v%d" % (lo + 2, hi, hi + 1))
    A.e("v_cvt_pk_bf16_f32 v%d, v%d, v%d" % (lo + 3, hi + 2, hi + 3))

def b_store_off(Pn, vt):
    if vt == 0:
        p, j = Pn // 8, Pn % 8
        return j * 8192 + ((p // 2) * 4 + p % 2) * 1024
    jp, i = Pn // 8, Pn % 8
    d16 = (i // 4) * 8 + i % 4
    return jp * 16384 + (d16 % 2) * 8192 + (d16 // 2) * 1024

def store_grp(reg, va, sbase, off):
    return ["s_add_u32 s%d, s%d, %d" % (sT0, sbase, off),
            "buffer_store_dwordx4 %s, v%d, s[%d:%d], s%d offen%s" % (vr(reg, 4), va, sWS, sWS + 3, sT0, "" if "plainst" in G.EXP else (" nt" if "ntst" in G.EXP else " sc1"))]


sCls, sM8, sGU = 49, 55, 63
sAcur2, sBg2, sAstr2, sAnx2, sBs42, sBs122 = 52, 53, 54, 16, 17, 18
sA2s, sB2s = 20, 24
STG = 144
FL_KVLO, FL_KVHI, FL_QC = FL_KVC, FL_QF, FL_QF + 16

def decode_ids(A):
    A.e("s_and_b32 s60, s2, 7\ns_lshr_b32 s61, s2, 3")
    A.e("s_lshr_b32 s62, s61, 4\ns_lshl_b32 s%d, s60, 1\ns_add_u32 s%d, s%d, s62" % (sH, sH, sH))
    A.e("s_and_b32 s%d, s61, 1\ns_bfe_u32 s66, s61, 0x30001" % sCls)
    A.e("s_lshr_b32 s%d, s66, 2" % sTy1)
    A.e("s_and_b32 s%d, s66, 3\ns_lshl_b32 s67, s%d, 2\ns_add_u32 s%d, s%d, s67" % (sMB, sCls, sMB, sMB))
    A.e("s_lshl_b32 s62, s62, 3\ns_add_u32 s62, s62, s66")
    A.e("s_cmp_lt_u32 s62, 14\ns_cselect_b32 s%d, 1, 0" % sGU)
    A.e("s_mul_i32 s60, s60, 14\ns_add_u32 s60, s60, s62\ns_min_u32 s60, s60, 111")
    A.e("s_lshr_b32 s%d, s60, 3\ns_and_b32 s%d, s60, 7" % (sFb, sM8))
    A.e("s_cmp_eq_u32 s%d, 1\ns_cselect_b32 s%d, s66, s%d\ns_cselect_b32 s%d, 0, s%d" % (sCls, sM8, sM8, sGU, sGU))
    A.e("s_and_b32 s%d, s%d, 1\ns_lshr_b32 s%d, s%d, 1" % (sWa, sW, sWw, sW))

def lane_dma_a(A, strideA, t0, t1):
    A.e("v_lshrrev_b32 v%d, 4, v%d\ns_lshl_b32 s%d, s%d, 2\nv_add_u32 v%d, s%d, v%d" % (t0, vLn, sT0, sWa, t0, sT0, t0))
    A.e("v_and_b32 v%d, 7, v%d\nv_xor_b32 v%d, v%d, v%d\nv_lshlrev_b32 v%d, 4, v%d" % (vDA, vLn, vDA, vDA, t0, vDA, vDA))
    A.e("v_lshrrev_b32 v%d, 3, v%d\ns_movk_i32 s%d, %d\nv_mul_lo_u32 v%d, v%d, s%d\nv_add_u32 v%d, v%d, v%d" % (t1, vLn, sT0, strideA, t1, t1, sT0, vDA, vDA, t1))

def lane_dma_b(A, strideB, t0, t1):
    A.e("v_lshrrev_b32 v%d, 4, v%d\ns_lshl_b32 s%d, s%d, 2\nv_add_u32 v%d, s%d, v%d" % (t0, vLn, sT0, sWa, t0, sT0, t0))
    A.e("v_and_b32 v%d, 15, v%d\nv_lshlrev_b32 v%d, 1, v%d\nv_xor_b32 v%d, v%d, v%d\nv_lshlrev_b32 v%d, 4, v%d" % (vDB, vLn, t0, t0, vDB, vDB, t0, vDB, vDB))
    A.e("v_lshrrev_b32 v%d, 4, v%d\ns_movk_i32 s%d, %d\nv_mul_lo_u32 v%d, v%d, s%d\nv_add_u32 v%d, v%d, v%d" % (t1, vLn, sT0, strideB, t1, t1, sT0, vDB, vDB, t1))

def lane_dma(A, strideA, strideB, t0, t1):
    lane_dma_a(A, strideA, t0, t1); lane_dma_b(A, strideB, t0, t1)

class Sim:
    def __init__(self, ops=None): self.ops = list(ops or [])
    def op(self, tag, n=1): self.ops += [tag] * n
    def wait_for(self, tags):
        last = -1
        for i, t in enumerate(self.ops):
            if t in tags: last = i
        return min(63, len(self.ops) - 1 - last)

def stg(n): return STG + 4 * n
def stg_off(n): return (n // 4) * 8192 + [0, 1, 4, 5][n % 4] * 1024
def pair_slot(Pn, vt):
    if vt == 0:
        p, j = Pn // 8, Pn % 8
        return j * 4 + p
    jp, i = Pn // 8, Pn % 8
    return (2 * jp + i % 2) * 4 + (i // 4) * 2 + (i % 4) // 2

def pair_regs(Pn):
    if Pn < 30: return ("v", 16 + 8 * Pn, 16 + 8 * Pn + 4)
    return ("a", 128 + 8 * (Pn - 30), 128 + 8 * (Pn - 30) + 4)

def st_store(reg_text, sbase, off):
    return ["s_add_u32 s%d, s%d, %d" % (sT0, sbase, off),
            "buffer_store_dwordx4 %s, v%d, s[%d:%d], s%d offen sc1" % (reg_text, vSt1, sWS, sWS + 3, sT0)]

def convert_stage(A, vt, sbase, scale=None):
    order = sorted(range(32), key=lambda Pn: (pair_regs(Pn)[0] == "a", -pair_slot(Pn, vt)))
    for Pn in order:
        f, lo, hi = pair_regs(Pn)
        n = pair_slot(Pn, vt)
        if f == "a":
            lo2, hi2 = 16, 20
            for q in range(4):
                A.e("v_accvgpr_read_b32 v%d, a%d\nv_accvgpr_read_b32 v%d, a%d" % (lo2 + q, lo + q, hi2 + q, hi + q))
            lo, hi = lo2, hi2
        pack_pair_inplace(A, lo, hi, scale=scale)
        if n >= 28:
            for ins in st_store(vr(lo, 4), sbase, stg_off(n)): A.e(ins)
            A.e("s_nop 1")
        else:
            for q in range(4): A.e("v_accvgpr_write_b32 a%d, v%d" % (stg(n) + q, lo + q))

def convert_store(A, vt, sbase):
    for Pn in range(32):
        f, lo, hi = pair_regs(Pn)
        if f == "a":
            lo2, hi2 = 16 + 8 * (Pn - 30), 20 + 8 * (Pn - 30)
            for q in range(4):
                A.e("v_accvgpr_read_b32 v%d, a%d\nv_accvgpr_read_b32 v%d, a%d" % (lo2 + q, lo + q, hi2 + q, hi + q))
            lo, hi = lo2, hi2
        pack_pair_inplace(A, lo, hi)
        for ins in st_store(vr(lo, 4), sbase, stg_off(pair_slot(Pn, vt))): A.e(ins)

def switch_a(A, strideA):
    for d, s_ in ((sA, sA2s), (sA + 2, sA2s + 2)): A.e("s_mov_b64 s[%d:%d], s[%d:%d]" % (d, d + 1, s_, s_ + 1))
    for d, s_ in ((sAcur, sAcur2), (sAstr, sAstr2), (sAnext, sAnx2)): A.e("s_mov_b32 s%d, s%d" % (d, s_))
    lane_dma_a(A, strideA, vFl, 0)

def switch_b(A, strideB):
    for d, s_ in ((sB, sB2s), (sB + 2, sB2s + 2)): A.e("s_mov_b64 s[%d:%d], s[%d:%d]" % (d, d + 1, s_, s_ + 1))
    for d, s_ in ((sBg, sBg2), (sBs4, sBs42), (sBs12, sBs122)): A.e("s_mov_b32 s%d, s%d" % (d, s_))
    lane_dma_b(A, strideB, vFl, 0)

def xn_load_all(): return "buffer_load_dword v%d, v%d, s[%d:%d], 0 offen sc1" % (vFl, vSt1, sDbg, sDbg + 3)

def xn_wait(A, name, one_reg=None, prefetched=False):
    if not G.MEGA: return
    ok = A.newlabel(name + "_xok"); lp = A.newlabel(name + "_xpoll"); chk = A.newlabel(name + "_xchk")
    A.e("s_cmp_lg_u32 s%d, 0\ns_cbranch_scc1 %s" % (sW, ok))
    A.e("s_mov_b32 s%d, 0x40000" % sT1)
    if one_reg is None: A.e("s_movk_i32 s%d, 0xff" % sT2)
    else: A.e("s_lshl_b32 s%d, 1, s%d" % (sT2, one_reg))
    if prefetched: A.e("s_waitcnt vmcnt(12)\ns_branch %s" % chk)
    A.label(lp)
    A.e(xn_load_all() + "\ns_waitcnt vmcnt(0)")
    A.label(chk)
    A.e("v_cmp_gt_u32 vcc, 16, v%d\ns_sub_u32 s%d, s%d, 1\ns_cmp_eq_u32 s%d, 0\ns_cbranch_scc1 %s" % (vFl, sT1, sT1, sT1, ok))
    A.e("s_and_b32 s%d, vcc_lo, s%d\ns_cbranch_scc0 %s\ns_sleep 6\ns_branch %s" % (sT0, sT2, ok, ok, lp) if False else
        "s_and_b32 s%d, vcc_lo, s%d\ns_cbranch_scc0 %s\ns_sleep 6\ns_branch %s" % (sT0, sT2, ok, lp))
    A.label(ok)

def line_flag(A, name, base, sreg, tmpv):
    A.e("s_add_u32 s%d, s%d, %d" % (sT3, sreg, base))
    flag_add(A, "s%d" % sT3, tmpv, 68, name)

def touch_gu(A):
    if "notouch" in G.EXP: return
    A.e("s_mul_i32 s%d, s%d, 56\ns_and_b32 s%d, s%d, 1\ns_mul_i32 s%d, s%d, 28\ns_add_u32 s%d, s%d, s%d" % (sT0, sM8, sT1, sW, sT1, sT1, sT0, sT0, sT1))
    A.e("s_mul_i32 s%d, s%d, 3584\ns_lshl_b32 s%d, s%d, 8\ns_add_u32 s%d, s%d, s%d" % (sT0, sT0, sT1, sFb, sT0, sT0, sT1))
    A.e("v_lshrrev_b32 v0, 1, v%d\nv_min_u32 v0, 27, v0\ns_movk_i32 s%d, 3584\nv_mul_lo_u32 v0, v0, s%d\nv_and_b32 v%d, 1, v%d\nv_lshl_add_u32 v0, v%d, 7, v0" % (vLn, sT1, sT1, vFl, vLn, vFl))
    A.e("buffer_load_dword v0, v0, s[%d:%d], s%d offen" % (sB2s, sB2s + 3, sT0))

sTch, sTchO, sTchI = 68, 84, 85
vTch = 13
def touch_setup(A, srdA, srdB, first_it):
    lab2 = A.newlabel("tch_a"); done = A.newlabel("tch_done")
    A.e("s_cmp_ge_u32 s%d, 2\ns_cbranch_scc1 %s" % (sW, lab2))
    for q in range(4): A.e("s_mov_b32 s%d, s%d" % (sTch + q, srdB + q) if q != 3 else "s_mov_b32 s%d, 0x20000" % (sTch + 3))
    A.e("v_lshrrev_b32 v%d, 2, v%d\nv_lshlrev_b32 v%d, 13, v%d\nv_and_b32 v0, 3, v%d\nv_lshl_add_u32 v%d, v0, 7, v%d" % (vTch, vLn, vTch, vTch, vLn, vTch, vTch))
    A.e("s_bfe_u32 s%d, s2, 0x20004\ns_lshl_b32 s%d, s%d, 5\ns_lshl_b32 s%d, s%d, 4\ns_add_u32 s%d, s%d, s%d\ns_add_u32 s%d, s%d, %d" % (sT0, sT0, sT0, sT1, sW, sT0, sT0, sT1, sT0, sT0, 128 * first_it))
    A.e("s_lshl_b32 s%d, s%d, 13\ns_lshl_b32 s%d, s%d, 9\ns_add_u32 s%d, s%d, s%d\ns_mov_b32 s%d, %d" % (sT0, sT0, sT1, sH, sTchO, sT0, sT1, sTchI, 128 * 8192))
    A.e("s_branch %s" % done)
    A.label(lab2)
    for q in range(4): A.e("s_mov_b32 s%d, s%d" % (sTch + q, srdA + q) if q != 3 else "s_mov_b32 s%d, 0x20000" % (sTch + 3))
    A.e("v_min_u32 v%d, 15, v%d\nv_lshrrev_b32 v0, 1, v%d\nv_lshlrev_b32 v0, 11, v0\nv_and_b32 v%d, 1, v%d\nv_lshl_add_u32 v%d, v%d, 7, v0" % (vTch, vLn, vTch, vTch, vTch, vTch, vTch))
    A.e("s_lshl_b32 s%d, s%d, 1\ns_and_b32 s%d, s%d, 1\ns_add_u32 s%d, s%d, s%d\ns_lshl_b32 s%d, s%d, 3\ns_and_b32 s%d, s2, 7\ns_add_u32 s%d, s%d, s%d" % (sT0, sTy1, sT1, sH, sT0, sT0, sT1, sT0, sT0, sT1, sT0, sT0, sT1))
    A.e("s_bfe_u32 s%d, s2, 0x20004\ns_lshl_b32 s%d, s%d, 2\ns_add_u32 s%d, s%d, s%d" % (sT1, sT2, sCls, sT1, sT1, sT2))
    A.e("s_lshl_b32 s%d, s%d, 3\ns_lshl_b32 s%d, s%d, 8\ns_add_u32 s%d, s%d, s%d\ns_lshl_b32 s%d, s%d, 11\ns_add_u32 s%d, s%d, %d\ns_movk_i32 s%d, 256" % (sT0, sT0, sT1, sT1, sT0, sT0, sT1, sT0, sT0, sTchO, sT0, 256 * first_it, sTchI))
    A.e("s_cmp_eq_u32 s%d, 3\ns_cselect_b32 s%d, 0x70000000, s%d" % (sW, sTchO, sTchO))
    A.label(done)

def touch_op():
    if "notouch" in G.EXP: return []
    return [["buffer_load_dword v0, v%d, s[%d:%d], s%d offen" % (vTch, sTch, sTch + 3, sTchO), "s_add_u32 s%d, s%d, s%d" % (sTchO, sTchO, sTchI)]]

sCls2 = 58
def gen_bc(A0, name, tail_g, tail_g_nogu, tail_q, hooks_gu=None):
    A = Em(A0)
    OUTL = []
    hooks_gu = hooks_gu or {}
    decode_ids(A)
    stamp(A, 0)
    A.e("s_cmp_eq_u32 s%d, 0" % sTy1)
    A.e("s_cselect_b32 s60, s%d, s%d\ns_cselect_b32 s61, s%d, s%d" % (P["wuk"], P["wuv"], P["wuk"] + 1, P["wuv"] + 1))
    A.e("s_cmp_eq_u32 s%d, 0" % sWw)
    A.e("s_cselect_b32 s66, s%d, s%d\ns_cselect_b32 s67, s%d, s%d" % (P["wg"], P["wu"], P["wg"] + 1, P["wu"] + 1))
    A.e("s_add_u32 s68, s%d, 0x%x\ns_addc_u32 s69, s%d, 0" % (P["ws"], XN_OFF, P["ws"] + 1))
    A.e("s_cmp_eq_u32 s%d, 1" % sCls)
    A.e("s_cselect_b32 s66, s%d, s66\ns_cselect_b32 s67, s%d, s67" % (P["wq"], P["wq"] + 1))
    A.e("s_mov_b32 s70, 0x%x\ns_cselect_b32 s70, 0x%x, s70" % (M * F * 2, M * H * D * 2))
    def sel(d, a_q, a_g): A.e("s_cselect_b32 s%d, %s, %s" % (d, a_q, a_g))
    A.e("s_mov_b32 s71, 0x%x\ns_mov_b32 s62, 0x%x\ns_mov_b32 s40, 0x%x" % (S * M * 2, S * DC * 2, DC * H * D * 2))
    A.e("s_cmp_eq_u32 s%d, 1" % sCls)
    ck, ck1 = "s%d" % P["ckv"], "s%d" % (P["ckv"] + 1)
    sel(sA, "s68", ck); sel(sA + 1, "s69", ck1); sel(sA + 2, "s71", "s62")
    sel(sA2s, ck, "s68"); sel(sA2s + 1, ck1, "s69"); sel(sA2s + 2, "s62", "s71")
    sel(sB, "s66", "s60"); sel(sB + 1, "s67", "s61"); sel(sB + 2, "s70", "s40")
    sel(sB2s, "s60", "s66"); sel(sB2s + 1, "s61", "s67"); sel(sB2s + 2, "s40", "s70")
    for r in (sA, sA2s, sB, sB2s):
        A.e("s_and_b32 s%d, s%d, 0xffff\ns_mov_b32 s%d, 0x20000" % (r + 1, r + 1, r + 3))
    A.e("s_lshl_b32 s%d, s%d, 4\ns_lshl_b32 s%d, s%d, 3\ns_add_u32 s40, s%d, s%d" % (sT0, sWw, sT1, sWa, sT0, sT1))
    A.e("s_lshl_b32 s60, s%d, 8\ns_add_u32 s60, s60, s40\ns_lshl_b32 s60, s60, 11" % sMB)
    A.e("s_lshl_b32 s61, s%d, 8\ns_add_u32 s61, s61, s40\ns_mul_i32 s61, s61, 896" % sM8)
    A.e("s_lshl_b32 s%d, s40, 7\ns_mov_b32 s%d, s%d\ns_add_u32 s%d, s%d, %d" % (sAw0, sAwr, sAw0, sAwEnd, sAw0, 3 * A_SLOT))
    A.e("s_lshl_b32 s66, s%d, 9\ns_lshl_b32 s67, s%d, 8\ns_add_u32 s66, s66, s67\ns_lshl_b32 s67, s%d, 16\ns_add_u32 s66, s66, s67" % (sH, sWw, sWa))
    A.e("s_lshl_b32 s67, s%d, 8\ns_mul_i32 s68, s%d, %d\ns_add_u32 s67, s67, s68" % (sFb, sWa, 8 * 3584))
    A.e("s_cmp_eq_u32 s%d, 1" % sCls)
    sel(sAcur, "s61", "s60"); sel(sAcur2, "s60", "s61")
    sel(sBg, "s66", "s66"); sel(sBg2, "s66", "s67")
    A.e("s_mov_b32 s60, %d\ns_mov_b32 s61, %d\ns_mov_b32 s66, %d\ns_mov_b32 s67, %d" % (32 * 2048, 32 * 896, (128 - 7 * 32 * 2048) & 0xffffffff, (128 - 7 * 32 * 896) & 0xffffffff))
    sel(sAstr, "s61", "s60"); sel(sAstr2, "s60", "s61"); sel(sAnext, "s67", "s66"); sel(sAnx2, "s66", "s67")
    A.e("s_mov_b32 s%d, %d\ns_mov_b32 s%d, %d\ns_mov_b32 s60, %d\ns_mov_b32 s61, %d" % (sBs4, 4 * 8192, sBs12, 12 * 8192, 4 * 3584, 12 * 3584))
    sel(sBs42, "s%d" % sBs4, "s60"); sel(sBs122, "s%d" % sBs12, "s61")
    A.e("s_lshl_b32 s%d, s%d, 13\ns_lshl_b32 s%d, s%d, 11\ns_add_u32 s%d, s%d, s%d\ns_add_u32 s%d, s%d, %d" % (sT0, sWw, sT1, sWa, sT0, sT0, sT1, sBw0, sT0, B_BASE))
    A.e("s_lshl_b32 s60, s%d, 6\ns_lshl_b32 s61, s%d, 2\ns_add_u32 s60, s60, s61\ns_lshl_b32 s61, s%d, 11" % (sH, sWa, sWw))
    A.e("s_lshl_b32 s66, s%d, 3\ns_add_u32 s66, s66, s60\ns_lshl_b32 s66, s66, 14\ns_add_u32 s66, s66, s61" % sMB)
    A.e("s_mov_b32 s67, 0x%x\ns_cmp_eq_u32 s%d, 0\ns_cselect_b32 s67, 0x%x, s67\ns_add_u32 s%d, s66, s67" % (V_OFF, sTy1, K_OFF, sOb1))
    A.e("s_lshl_b32 s66, s%d, 3\ns_add_u32 s66, s66, s60\ns_lshl_b32 s66, s66, 14\ns_add_u32 s66, s66, s61\ns_add_u32 s%d, s66, 0x%x" % (sM8, sOb2, Q_OFF))
    A.e("s_lshl_b32 s66, s%d, 4\ns_lshl_b32 s67, s%d, 3\ns_add_u32 s66, s66, s67\ns_mul_i32 s66, s66, %d\ns_lshl_b32 s67, s%d, 2\ns_add_u32 s66, s66, s67\ns_lshl_b32 s67, s%d, 1\ns_add_u32 s66, s66, s67\ns_add_u32 s66, s66, 128\ns_lshl_b32 s66, s66, 10\ns_add_u32 s%d, s66, 0x%x" %
        (sM8, sWa, ACT_KS, sFb, sWw, sOb3, ACT_OFF))
    A.e("s_mov_b32 s%d, 0x%x\ns_mov_b32 s%d, 0x%x" % (sQc, QSCALE, sQc + 1, QSCALE))
    A.e("s_mov_b32 s%d, 0\ns_mov_b32 s%d, %d\ns_mov_b32 s%d, 0\ns_mov_b32 s%d, 0" % (sZero, sWrap, 3 * A_SLOT, sRd0, sRd1))
    A.e("v_lshrrev_b32 v21, 4, v%d\nv_and_b32 v20, 15, v%d\nv_lshrrev_b32 v22, 1, v20\nv_xor_b32 v23, v21, v22" % (vLn, vLn))
    A.e("s_lshl_b32 s%d, s%d, 14\nv_lshlrev_b32 v24, 7, v20\nv_add_u32 v24, s%d, v24\nv_lshl_add_u32 v%d, v23, 4, v24\nv_xor_b32 v%d, 64, v%d" % (sT0, sWa, sT0, vA0b, vA1b, vA0b))
    A.e("v_lshrrev_b32 v22, 2, v20\nv_and_b32 v23, 3, v%d\nv_and_b32 v24, 1, v21\nv_lshl_or_b32 v24, v24, 2, v22" % vLn)
    A.e("v_lshl_add_u32 v25, v21, 3, v22\nv_lshlrev_b32 v25, 8, v25\nv_lshl_add_u32 v25, v23, 3, v25\nv_add_u32 v25, %d, v25" % B_BASE)
    A.e("s_lshl_b32 s%d, s%d, 2" % (sT0, sWw))
    for tl in range(4):
        A.e("s_add_u32 s%d, s%d, %d\nv_xor_b32 v26, s%d, v24\nv_lshl_add_u32 v%d, v26, 5, v25" % (sT1, sT0, tl, sT1, vB + tl))
    A.e("v_lshlrev_b32 v%d, 4, v%d" % (vSt1, vLn))
    if G.MEGA: srd(A, sDbg, P["dbg"], P["dbg"] + 1, 256)
    A.e("s_cmp_eq_u32 s%d, 1\ns_cbranch_scc1 %s_clsq" % (sCls, name))
    lane_dma(A, 2048, 8192, 28, 29)
    for grp in (dma_A(0, 4), dma_A(1, 4), dma_B(0), dma_A(0, 4), dma_B(1), dma_A(1, 4), dma_B(2), dma_A(0, 4), dma_B(3)):
        for g in grp:
            for ins in g: A.e(ins)
    touch_setup(A, sA, sB, 2)
    stamp(A, 1)
    A.e("s_waitcnt vmcnt(24)\ns_barrier")
    stamp(A, 2)
    a, b = rd_addr(0)
    for ins in a + b: A.e(ins)
    for ins in frag_reads(0, "B"): A.e(ins)
    A.e("s_mov_b32 s%d, 6\ns_mov_b32 s%d, 0" % (sLeft, sCls2))
    A.e("s_cmp_eq_u32 s%d, 1\ns_cbranch_scc1 %s_first1" % (sTy1, name))
    for vt in (0, 1):
        A.label("%s_first%d" % (name, vt))
        substep(A, 0, "B", "B", vt, first=True, extra_vm=touch_op())
        substep(A, 1, "B", "B", vt)
        substep(A, 2, "B", "B", vt)
        substep(A, 3, "B", "B", vt)
        A.e(".p2align 6")
        A.label("%s_L0_%d" % (name, vt))
        for s in range(3): substep(A, s, "B", "B", vt, extra_vm=touch_op() if s == 0 else None)
        def sw_a(vt=vt):
            stub = A.newlabel(name + "_swa"); back = A.newlabel(name + "_swab")
            A.e("s_sub_u32 s%d, s%d, s%d\ns_cmp_eq_u32 s%d, 1\ns_cbranch_scc1 %s" % (sT0, sLeft, sCls2, sT0, stub))
            A.label(back)
            OUTL.append((stub, back))
        substep(A, 3, "B", "B", vt, pre=sw_a)
        lab = A.newlabel(name + "_notouch")
        A.e("s_cmp_lg_u32 s%d, %d\ns_cbranch_scc1 %s" % (sLeft, 3, lab))
        A.e("s_cmp_eq_u32 s%d, 1\ns_cbranch_scc1 %s" % (sCls, lab))
        touch_gu(A)
        if G.MEGA:
            l2 = A.newlabel(name + "_nolncld")
            A.e("s_cmp_lg_u32 s%d, 0\ns_cbranch_scc1 %s" % (sW, l2))
            A.e(xn_load_all())
            A.label(l2)
        A.label(lab)
        A.e("s_sub_u32 s%d, s%d, 1\ns_cmp_lg_u32 s%d, 0\ns_cbranch_scc1 %s_L0_%d" % (sLeft, sLeft, sLeft, name, vt))
        A.e("s_cmp_eq_u32 s%d, 1\ns_cbranch_scc1 %s_qtail%d" % (sCls, name, vt))
        if vt == 0: stamp(A, 3)
        substep(A, 28, "B", "B", vt, pre=lambda: switch_b(A, 3584))
        for s in (29, 30, 31): substep(A, s, "B", "B", vt)
        A.e("s_nop 7")
        A.e("s_cmp_eq_u32 s%d, 0\ns_cbranch_scc1 %s_gnogu%d" % (sGU, name, vt))
        convert_stage(A, vt, sOb1)
        A.e("s_branch %s_gu" % name)
        A.label("%s_gnogu%d" % (name, vt))
        convert_store(A, vt, sOb1)
        A.e("s_branch %s_gnogu" % name)
    A.label(name + "_gu")
    stamp(A, 4)
    sim = Sim(["A29"] * 4 + ["B29"] * 4 + ["A30"] * 4 + ["B30"] * 4 + ["A31"] * 4 + ["B31"] * 4 + ["kv"] * 4)
    def unrolled(s0, nsub, acc_vt, first_at, st_sched, st_base, flag_at, flag_fn, dma_until, hooks):
        done = 0
        for s in range(s0, s0 + nsub):
            k = s - s0
            hk = hooks.get(k, {})
            need = ["A%d" % (s - 3), "B%d" % (s - 3)] + hk.get("need", [])
            if k == flag_at: need.append("st")
            wn = min(sim.wait_for(need), 63)
            ex = []
            for _ in range(st_sched.get(k, 0)):
                ex.append(st_store(ar(stg(done), 4), st_base, stg_off(done))); done += 1
            da, db = s < dma_until - 1, s < dma_until
            dma = True if (da and db) else ("B" if db else False)
            if da: sim.op("A%d" % s, 4)
            if db: sim.op("B%d" % s, 4)
            sim.op("st", len(ex))
            if "sc" in hk:
                ex.append(hk["sc"])
                for t in hk.get("vm", []): sim.op(t)
            pb = None
            if k == flag_at: pb = flag_fn
            if "post" in hk: pb = hk["post"]
            pre = hk.get("pre")
            substep(A, s, "B", "B", acc_vt, first=(k == first_at), waitn=wn, dma=dma, extra_vm=ex, post_bar=pb, pre=pre, pre_bar=hk.get("pre_bar"))
    unrolled(32, 14, 0, 0, {k: 4 for k in range(7)}, sOb1, 10, lambda: line_flag(A, name + "_kvlo", FL_KVLO, sH, vFl - 1), 42, hooks_gu)
    stamp(A, 6)
    A.e("s_nop 7")
    for j in range(8):
        for p in range(2):
            g0, g1 = accB(2 * p, j, 0), accB(2 * p + 1, j, 0)
            u0, u1 = accB(2 * p + 4, j, 0), accB(2 * p + 5, j, 0)
            regs = []
            for kk, x in enumerate((g0, g1, u0, u1)):
                if x[0] == "a":
                    t = 16 + 4 * kk if False else None
                regs.append(x)
            use = []
            for kk, x in enumerate((g0, g1, u0, u1)):
                if x[0] == "a":
                    t = 16 + 4 * (kk - 2)
                    for q in range(4): A.e("v_accvgpr_read_b32 v%d, a%d" % (t + q, x[1] + q))
                    use.append(t)
                else: use.append(x[1])
            a0, a1, b0, b1 = use
            for a, b in ((a0, b0), (a1, b1)):
                for q in (0, 2):
                    A.e("v_pk_mul_f32 %s, %s, %s" % (vr(a + q, 2), vr(a + q, 2), vr(b + q, 2)))
            pack_pair_inplace(A, a0, a1)
            n = 2 * j + p
            for q in range(4): A.e("v_accvgpr_write_b32 a%d, v%d" % (stg(n) + q, a0 + q))
    stamp(A, 7)
    tail_g(A)
    A.label(name + "_gnogu")
    tail_g_nogu(A)
    for stub, back in OUTL:
        A.label(stub)
        xn_wait(A, name + "g", prefetched=True)
        A.e("s_barrier") if False else None
        switch_a(A, 896)
        A.e("s_branch %s" % back)
    A.label(name + "_clsq")
    lane_dma(A, 896, 8192, 28, 29)
    if G.MEGA:
        A.e("s_lshr_b32 s58, s2, 4\ns_lshl_b32 s58, s58, 3\ns_and_b32 s59, s2, 7\ns_add_u32 s58, s58, s59")
        A.e("s_lshl_b32 s59, s58, 4")
        ln_loads(A, name, rows_reg=59, b=32)
        A.e("s_add_u32 s59, s59, 8")
        ln_loads(A, name, rows_reg=59, b=96)
        relayout_issue(A, name, ks="s58", lds=0)
        A.e("s_add_u32 s59, s58, 128")
        relayout_issue(A, name, ks="s59", lds=32768)
    for s in range(4):
        for g in dma_B(s):
            for ins in g: A.e(ins)
    stamp(A, 1)
    if G.MEGA:
        ln_phase(A, name, loads_done=30, bs=(32, 96), zero_flags=False)
        lab = A.newlabel(name + "_nozero")
        A.e("s_cmp_lg_u32 s%d, 0\ns_cbranch_scc1 %s" % (sW, lab))
        A.e("s_lshl_b32 s%d, s58, 9\ns_add_u32 s%d, s%d, 0x%x\nv_mov_b32 v28, 0\nv_lshlrev_b32 v29, 7, v%d" % (sT0, sT0, sT0, FLAG_OFF, vLn))
        A.e("s_mov_b64 s[60:61], exec\ns_mov_b64 exec, 15")
        A.e("buffer_store_dword v28, v29, s[%d:%d], s%d offen sc1" % (sWS, sWS + 3, sT0))
        A.e("s_mov_b64 exec, s[60:61]")
        A.label(lab)
        srd(A, sDbg, P["dbg"], P["dbg"] + 1, 256)
        A.e("s_waitcnt vmcnt(0)\ns_barrier")
        A.e("s_lshr_b32 s59, s58, 4")
        xn_add(A, name, 59)
        stamp(A, 16)
        if "notouch" not in G.EXP:
            A.e("v_lshrrev_b32 v26, 3, v%d\nv_lshlrev_b32 v26, 11, v26\nv_and_b32 v27, 7, v%d\nv_lshl_add_u32 v26, v27, 7, v26" % (vLn, vLn))
            A.e("s_lshl_b32 s%d, s58, 14\ns_add_u32 s%d, s%d, %d\ns_sub_u32 s%d, s%d, 1\ns_lshl_b32 s%d, s%d, 10\ns_add_u32 s%d, s%d, s%d" % (sT0, sT0, sT0, 1024 * 2048, sT1, sW, sT1, sT1, sT0, sT0, sT1))
            A.e("s_cmp_eq_u32 s%d, 0\ns_cselect_b32 s%d, 0x70000000, s%d\ns_cmp_eq_u32 s%d, 3\ns_cselect_b32 s%d, 0x70000000, s%d" % (sW, sT0, sT0, sW, sT0, sT0))
            A.e("buffer_load_dword v0, v26, s[%d:%d], s%d offen" % (sA2s, sA2s + 3, sT0))
        A.e("s_add_u32 s59, s58, 128")
        relayout_reads(A, lds=0, R=160)
        relayout_reads(A, lds=32768, R=192)
        A.e("s_waitcnt lgkmcnt(0)")
        relayout_stores(A, ks="s58", R=160)
        relayout_stores(A, ks="s59", R=192)
        xn_wait(A, name, one_reg=sM8)
        A.e("s_barrier")
        stamp(A, 17)
    for h_ in (0, 1, 0, 1, 0):
        for g in dma_A(h_, 4):
            for ins in g: A.e(ins)
    A.e("s_waitcnt vmcnt(12)\ns_barrier")
    stamp(A, 2)
    a, b = rd_addr(0)
    for ins in a + b: A.e(ins)
    for ins in frag_reads(0, "B"): A.e(ins)
    sim = Sim(["A-3"] * 4 + ["A-2"] * 4 + ["A-1"] * 4)
    def hq9():
        switch_a(A, 2048)
    def hq10():
        xn_wait(A, name + "q")
        switch_b(A, 8192)
    def wf_add():
        if not G.MEGA: return
        A.e("s_movk_i32 s59, 8")
        xn_add(A, name + "wf", 59)
    hq = {9: dict(pre=hq9), 10: dict(pre=hq10), 2: dict(post=wf_add)}
    unrolled(0, 14, 0, 0, {}, None, -1, None, 99, hq)
    stamp(A, 3)
    A.e("s_nop 7")
    convert_stage(A, 0, sOb2, scale=sQc)
    sim.op("st", 4)
    stamp(A, 4)
    A.e("s_cmp_eq_u32 s%d, 1\ns_cbranch_scc1 %s_qb1" % (sTy1, name))
    sim0 = Sim(sim.ops)
    for vt in (0, 1):
        A.label("%s_qb%d" % (name, vt))
        sim = Sim(sim0.ops)
        unrolled(14, 10, vt, 0, {k: 4 for k in range(7)}, sOb2, 9, lambda: line_flag(A, name + "_qc", FL_QC, sH, vFl - 1), 99, {})
        touch_setup(A, sA, sB, 5)
        A.e("s_mov_b32 s%d, 5\ns_mov_b32 s%d, 100" % (sLeft, sCls2))
        A.e("s_branch %s_L0_%d" % (name, vt))
    for vt in (0, 1):
        A.label("%s_qtail%d" % (name, vt))
        substep(A, 44, "B", "B", vt, dma=False, waitn=16)
        substep(A, 45, "B", "B", vt, dma=False, waitn=4)
        A.e("s_nop 7")
        if vt == 0: stamp(A, 6)
        convert_store(A, vt, sOb1)
        if vt == 0: A.e("s_branch %s_qend" % name)
    A.label(name + "_qend")
    stamp(A, 7)
    tail_q(A)

def h_stores(A, vlane16):
    for j in range(8):
        for p in range(2):
            n = 2 * j + p
            A.e("s_add_u32 s%d, s%d, %d" % (sT0, sOb3, j * ACT_KS * 1024 + p * 1024))
            A.e("buffer_store_dwordx4 %s, v%d, s[%d:%d], s%d offen sc1" % (ar(stg(n), 4), vlane16, sWS, sWS + 3, sT0))
```

```python
import sys
sys.path.insert(0, "dev")
from mega_common import *
import mega_p as mega_bc

HEADER = open("parallel_sum__compressed_kv_cla__glu_gated_bilinear__prompt.s.ref").read().split("; Override launch")[0]

def k_ln(A, name):
    kernel_begin(A, name); common_setup(A, name)
    E = Em(A)
    mega_bc.relayout_issue(E, name)
    mega_bc.ln_phase(E, name)
    E.e("s_barrier")
    mega_bc.relayout_reads(E)
    E.e("s_waitcnt lgkmcnt(0)")
    mega_bc.relayout_stores(E)
    A.label(name + "_done"); A.e("s_endpgm")

def k_bc(A, name):
    kernel_begin(A, name); common_setup(A, name)
    def fin(E):
        E.e("s_waitcnt vmcnt(0) lgkmcnt(0)")
        stamp(E, 8)
        stamp_flush(E, 1)
        E.e("s_endpgm")
    def tail_g(E):
        mega_bc.h_stores(E, mega_bc.vSt1)
        fin(E)
    mega_bc.gen_bc(A, name, tail_g, fin, fin)
    A.label(name + "_done"); A.e("s_endpgm")

KERNELS = {
    "ln": dict(name="ln_kernel", grid=256, block=256, lds=98304, gen=k_ln, vgprs=128, accum=128),
    "bc": dict(name="proj_kernel", grid=256, block=256, lds=163840, gen=k_bc, vgprs=512, accum=256),
}

def k_mega(A, name):
    import mega_d, mega_e
    kernel_begin(A, name); common_setup(A, name)
    code_prefetch(A, name, 120 * 1024)
    B = mega_bc
    def poll_all(E, stem, line_instrs, target):
        ok = E.newlabel(stem + "_ok"); lp = E.newlabel(stem + "_poll")
        E.e("s_cmp_lg_u32 s%d, 0\ns_cbranch_scc1 %s" % (sW, ok))
        for ins in line_instrs: E.e(ins)
        E.e("s_lshl_b32 s66, s66, 7\ns_add_u32 s66, s66, 0x%x\ns_mov_b32 s67, 0x80000" % FLAG_OFF)
        E.label(lp)
        E.e("buffer_load_dword v14, off, s[%d:%d], s66 sc1\ns_waitcnt vmcnt(0)\nv_readfirstlane_b32 s68, v14\ns_sub_u32 s67, s67, 1" % (sWS, sWS + 3))
        E.e("s_cmp_eq_u32 s67, 0\ns_cbranch_scc1 %s\ns_cmp_ge_u32 s68, %d\ns_cbranch_scc1 %s\ns_sleep 1\ns_branch %s" % (ok, target, ok, lp))
        E.label(ok)
    def tail_e(E):
        E.e("s_waitcnt vmcnt(0) lgkmcnt(0)")
        stamp(E, 25)
        stamp_flush(E, 0)
    esim = [None]
    def e_start(E):
        mega_e.wf_check(E, name)
        E.e("s_waitcnt lgkmcnt(0)\ns_barrier")
        esim[0] = mega_e.e_early(E, name, 3)
    def tail_d(E):
        D = mega_d
        E.e("s_waitcnt vmcnt(0)\ns_barrier")
        E.e("s_lshl_b32 s66, s%d, 2\ns_lshr_b32 s67, s%d, 2\ns_add_u32 s66, s66, s67\ns_add_u32 s66, s66, %d" % (D.sQt, D.sH, FL_CTXC))
        flag_add(E, "s66", 80, 68, name + "_ctxc")
        stamp(E, 15)
        mega_e.gen_e(E, name, tail_e, sim=esim[0], vtmp=3)
    D = mega_d
    def flag_req(c):
        c.e("s_add_u32 s58, s%d, %d\ns_lshl_b32 s58, s58, 7\ns_add_u32 s58, s58, 0x%x" % (B.sH, B.FL_KVLO, FLAG_OFF))
        c.e("s_add_u32 s59, s%d, %d\ns_lshl_b32 s59, s59, 7\ns_add_u32 s59, s59, 0x%x" % (B.sH, B.FL_QC, FLAG_OFF))
        c.e("s_add_u32 s66, s%d, %d\ns_lshl_b32 s66, s66, 7\ns_add_u32 s66, s66, 0x%x" % (B.sH, B.FL_KVHI, FLAG_OFF))
        c.e("s_cmp_eq_u32 s%d, 1\ns_cselect_b32 s66, s66, s58" % B.sCls)
        c.e("v_mov_b32 v13, s66\nv_writelane_b32 v13, s58, 0\nv_writelane_b32 v13, s59, 1")
        c.e("buffer_load_dword v14, v13, s[%d:%d], 0 offen sc1" % (sWS, sWS + 3))
    def flag_check(E):
        ok = E.newlabel(name + "_dok"); lp = E.newlabel(name + "_dpoll")
        E.e("s_mov_b32 s67, 0x80000")
        E.label(lp)
        E.e("v_readlane_b32 s66, v14, 0\nv_readlane_b32 s68, v14, 1\nv_readlane_b32 s69, v14, 2\ns_sub_u32 s67, s67, 1\ns_cmp_eq_u32 s67, 0\ns_cbranch_scc1 %s" % ok)
        E.e("s_min_u32 s66, s66, s68\ns_min_u32 s66, s66, s69\ns_cmp_ge_u32 s66, 8\ns_cbranch_scc1 %s" % ok)
        E.e("s_sleep 1\nbuffer_load_dword v14, v13, s[%d:%d], 0 offen sc1\ns_waitcnt vmcnt(0)\ns_branch %s" % (sWS, sWS + 3, lp))
        E.label(ok)
    def guc_flag(E):
        lab = E.newlabel(name + "_noguc")
        E.e("s_cmp_eq_u32 s49, 0xffff\ns_cbranch_scc1 %s" % lab)
        E.e("s_waitcnt vmcnt(8)\ns_barrier")
        E.e("s_add_u32 s66, s49, %d\ns_mov_b32 s49, 0xffff" % FL_GUC)
        flag_add(E, "s66", 88, 68, name + "_guc")
        E.label(lab)
    def enter_d(E, publish_base, with_h):
        if publish_base is not None:
            E.e("s_waitcnt vmcnt(0)\ns_barrier")
            B.line_flag(E, name + "_kvf", publish_base, B.sH, 13)
        flag_req(E)
        D.d_setup(E)
        stamp(E, 9)
        E.e("s_waitcnt vmcnt(0) lgkmcnt(0)")
        flag_check(E)
        E.e("s_barrier")
        D.load_q(E)
        D.d_prologue_dma(E)
        D.zero_o(E)
        if with_h:
            B.h_stores(E, D.vLane16)
            E.e("s_mov_b32 s49, s%d" % B.sM8)
        else:
            E.e("s_mov_b32 s49, 0xffff\ns_waitcnt vmcnt(24)")
        E.e("s_branch %s_dstart" % name)
    def tail_g(E): enter_d(E, None, True)
    def tail_g_nogu(E): enter_d(E, B.FL_KVLO, False)
    def tail_q(E):
        enter_d(E, B.FL_KVHI, False)
        E.label(name + "_dstart")
        stamp(E, 10)
        D.gen_d(E, name, tail_d, entry_done=True, first_wait=40, after_z=guc_flag, before_final=e_start)
    mega_bc.gen_bc(A, name, tail_g, tail_g_nogu, tail_q)
    A.label(name + "_done"); A.e("s_endpgm")
    mega_d.d_subroutines(A, name)

KERNELS["mega"] = dict(name="fused_kernel", grid=256, block=256, lds=163840, gen=k_mega, vgprs=512, accum=256)

def build(kernels):
    A = Asm()
    A.e(HEADER.rstrip())
    for k in kernels:
        A.e("; @launch kernel=%s grid=(%d,1,1) block=(%d,1,1) lds=%d" % (k["name"], k["grid"], k["block"], k["lds"]))
    A.e('.amdgcn_target "amdgcn-amd-amdhsa--gfx950"')
    for k in kernels: k["gen"](A, k["name"])
    for k in kernels: kernel_desc(A, k["name"], k["vgprs"], k["accum"], k.get("sgprs", 102))
    return A.text()

if __name__ == "__main__":
    out = sys.argv[1]
    names = sys.argv[2].split(",")
    for opt in sys.argv[3:]:
        if opt.startswith("stamp"):
            G.STAMP = True; G.STAMP_WG = int(opt[5:] or 0)
        elif opt.startswith("exp="): G.EXP = set(opt[4:].split("+"))
        elif opt == "mega": G.MEGA = True
    try:
        import mega_d, mega_e
        mega_d.register(KERNELS); mega_e.register(KERNELS)
    except ImportError as e:
        pass
    open(out, "w").write(build([KERNELS[n] for n in names]))
```
